```python
import torch

def _softmax(x, axis=-1):
    return torch.softmax(x, dim=axis)
def _gelu(x):
    return torch.nn.functional.gelu(x, approximate="tanh")
def _silu(x):
    return torch.nn.functional.silu(x)
def _sigmoid(x):
    return torch.sigmoid(x)
def _layernorm(x, axis=-1, eps=1e-5):
    m = x.mean(dim=axis, keepdim=True)
    v = x.var(dim=axis, keepdim=True, unbiased=False)
    return (x - m) / torch.sqrt(v + eps)
def _scatter_add(tgt, idx, src, axis=0):
    return tgt.clone().index_add_(axis, idx, src)
def _segment_sum(src, seg, n):
    out = torch.zeros((n,) + src.shape[1:], dtype=src.dtype)
    return out.index_add_(0, seg, src)
def _pad(x, pw):
    flat = tuple(v for pair in reversed(pw) for v in pair)
    return torch.nn.functional.pad(x, flat)

kernel_name = 'standalone__modern_conv_block_replknet__vision'

def setup_inputs():

    _w = (lambda a: (lambda t: t.to(torch.bfloat16) if t.is_floating_point() else t)(torch.as_tensor(a)))
    H = W = 384
    C = 96
    K = 3
    return {
        "x": _w((lambda *s: torch.randn(*s, dtype=torch.bfloat16) * 0.05)(1, H, W, C)),
        "dw_large": _w((lambda *s: torch.randn(*s, dtype=torch.bfloat16) * 0.4)(K, K, C) * (1.0 / K)),
        "dw_small": _w((lambda *s: torch.randn(*s, dtype=torch.bfloat16) * 0.4)(5, 5, C) * 0.2),
        "w1": _w((lambda *s: torch.randn(*s, dtype=torch.bfloat16) * 0.4)(C, 4 * C) * (C ** -0.5)),
        "w2": _w((lambda *s: torch.randn(*s, dtype=torch.bfloat16) * 0.1)(4 * C, C) * ((4 * C) ** -0.5)),
    }

def reference(x, dw_large, dw_small, w1, w2):
    B, H, W, C = x.shape
    Kl = dw_large.shape[0]
    pl = (Kl - 1) // 2
    xpl = _pad(x, ((0,0),(pl,pl),(pl,pl),(0,0)))
    out = torch.zeros_like(x)
    for i in range(Kl):
        for j in range(Kl):
            out = out + xpl[:, i:i+H, j:j+W, :] * dw_large[i, j][None, None, None, :]
    Ks = dw_small.shape[0]
    ps = (Ks - 1) // 2
    xps = _pad(x, ((0,0),(ps,ps),(ps,ps),(0,0)))
    for i in range(Ks):
        for j in range(Ks):
            out = out + xps[:, i:i+H, j:j+W, :] * dw_small[i, j][None, None, None, :]
    h = _layernorm(out, axis=-1)
    h = _gelu(torch.einsum('bhwc,ce->bhwe', h, w1))
    h = torch.einsum('bhwe,ec->bhwc', h, w2)
    return x + h
```

```python
import re


def R(kind, base, n=1):
    regs = frozenset((kind, base + i) for i in range(n))
    if n == 1:
        fmt = f"{kind}{base}"
    else:
        fmt = f"{kind}[{base}:{base + n - 1}]"
    return fmt, regs


class Reg:
    def __init__(self, kind, base, n=1):
        self.kind, self.base, self.n = kind, base, n

    def __str__(self):
        if self.n == 1:
            return f"{self.kind}{self.base}"
        return f"{self.kind}[{self.base}:{self.base + self.n - 1}]"

    def set(self):
        return frozenset((self.kind, self.base + i) for i in range(self.n))

    def sub(self, off, n=1):
        assert off + n <= self.n, (self, off, n)
        return Reg(self.kind, self.base + off, n)


def V(b, n=1):
    return Reg('v', b, n)


def A(b, n=1):
    return Reg('a', b, n)


def S(b, n=1):
    return Reg('s', b, n)


def regs_of(*xs):
    out = set()
    for x in xs:
        if isinstance(x, Reg):
            out |= x.set()
    return frozenset(out)


class I:
    def __init__(self, text, kind, rd=(), wr=(), passes=0, blk=0, srcc=(), nbytes=8, cost=None, note=None):
        self.text, self.kind = text, kind
        self.rd = frozenset(rd)
        self.wr = frozenset(wr)
        self.passes = passes
        self.blk = blk
        self.srcc = frozenset(srcc)
        self.nbytes = nbytes
        self.cost = cost
        self.note = note

    def __repr__(self):
        return self.text


def valu(op, dst, *src, mods="", extra_rd=(), extra_wr=(), e64=True, kind='valu'):
    t = f"{op} {dst}, " + ", ".join(str(s) for s in src) + (" " + mods if mods else "")
    return I(t, kind, rd=regs_of(*src) | frozenset(extra_rd), wr=regs_of(dst) | frozenset(extra_wr))


def trans(op, dst, src, neg=False, mods=""):
    t = f"{op}_e64 {dst}, {'-' if neg else ''}{src}" + (" " + mods if mods else "")
    return I(t, 'trans', rd=regs_of(src), wr=regs_of(dst))


def pk(op, dst, *src, mods=""):
    t = f"{op} {dst}, " + ", ".join(str(s) for s in src) + (" " + mods if mods else "")
    return I(t, 'pk', rd=regs_of(*src), wr=regs_of(dst))


def mfma32(d, a, b, c):
    t = f"v_mfma_f32_32x32x16_bf16 {d}, {a}, {b}, {c}"
    return I(t, 'mfma', rd=regs_of(a, b, c), wr=regs_of(d), passes=8, blk=8, srcc=regs_of(c))


def smfmac16(d, a, b, idx):
    t = f"v_smfmac_f32_16x16x64_bf16 {d}, {a}, {b}, {idx}"
    return I(t, 'mfma', rd=regs_of(a, b, idx, d), wr=regs_of(d), passes=4, blk=12, srcc=regs_of(d))


def mfma16k16(d, a, b, c):
    t = f"v_mfma_f32_16x16x16_bf16 {d}, {a}, {b}, {c}"
    return I(t, 'mfma', rd=regs_of(a, b, c), wr=regs_of(d), passes=4, blk=4, srcc=regs_of(c), note='legacy')


def dsr(op, dst, addr, off=0, mods=None):
    m = mods if mods is not None else (f"offset:{off}" if off else "")
    assert 0 <= off < 65536
    t = f"{op} {dst}, {addr}" + (" " + m if m else "")
    return I(t, 'dsr', rd=regs_of(addr), wr=regs_of(dst))


def dsw(op, addr, src, off=0):
    assert 0 <= off < 65536
    t = f"{op} {addr}, {src}" + (f" offset:{off}" if off else "")
    cost = {1: 8, 2: 12, 4: 20}[src.n]
    return I(t, 'dsw', rd=regs_of(addr, src), cost=cost)


def bload(dst, voff, srd, soff, off=0, op=None, mods=""):
    assert 0 <= off < 4096
    op = op or {1: 'buffer_load_dword', 2: 'buffer_load_dwordx2', 4: 'buffer_load_dwordx4'}[dst.n]
    t = f"{op} {dst}, {voff}, {srd}, {soff} offen" + (f" offset:{off}" if off else "") + (" " + mods if mods else "")
    return I(t, 'vmld', rd=regs_of(voff, srd, soff), wr=regs_of(dst))


def bload_lds(voff, srd, soff, off=0):
    assert 0 <= off < 4096
    t = f"buffer_load_dwordx4 {voff}, {srd}, {soff} offen" + (f" offset:{off}" if off else "") + " lds"
    return I(t, 'vmld', rd=regs_of(voff, srd, soff) | {('m0', 0)}, wr=())


def bstore(src, voff, srd, soff, off=0, mods=""):
    assert 0 <= off < 4096
    op = {1: 'buffer_store_dword', 2: 'buffer_store_dwordx2', 4: 'buffer_store_dwordx4'}[src.n]
    t = f"{op} {src}, {voff}, {srd}, {soff} offen" + (f" offset:{off}" if off else "") + (" " + mods if mods else "")
    return I(t, 'vmst', rd=regs_of(src, voff, srd, soff), note=('stdata', regs_of(src)))


def salu(text, rd=(), wr=()):
    return I(text, 'salu', rd=rd, wr=wr, nbytes=4)


def nop(n=0):
    return I(f"s_nop {n}", 'salu', nbytes=4, note=('nop', n + 1))


def wait(vm=None, lgkm=None):
    parts = []
    if vm is not None:
        parts.append(f"vmcnt({vm})")
    if lgkm is not None:
        parts.append(f"lgkmcnt({lgkm})")
    return I("s_waitcnt " + " ".join(parts), 'wait', nbytes=4, note=('wait', vm, lgkm))


def bar():
    return I("s_barrier", 'bar', nbytes=4)


def label(name):
    return I(f"{name}:", 'label', nbytes=0)


def raw(text, nbytes=4):
    return I(text, 'raw', nbytes=nbytes)


class AutoWait(I):
    def __init__(self):
        super().__init__("AUTOWAIT", 'autowait', nbytes=4)


def simulate(seq, verbose=False):
    t = 0
    valu_free = 0
    mem_ok = 0
    mfma_free = 0
    pk_ok = 0
    last_legacy = None
    times = []
    stall_pk = stall_mfma = 0
    for ins in seq:
        k = ins.kind
        if k in ('label',):
            times.append(t)
            continue
        if k in ('valu', 'trans', 'pk'):
            s = max(t, valu_free)
            if k == 'pk' and pk_ok > s:
                stall_pk += pk_ok - s
                s = pk_ok
            c = 8 if k == 'trans' else 4
            t = s + c
            valu_free = t
            mem_ok = t + 8
        elif k == 'mfma':
            s = max(t, valu_free)
            leg = ins.note == 'legacy'
            mf = mfma_free + (8 if (last_legacy is not None and last_legacy and not leg) else 0)
            if mf > s:
                stall_mfma += mf - s
                s = mf
            last_legacy = leg
            t = s + 4
            valu_free = s + ins.blk
            mem_ok = s + 8
            mfma_free = s + 4 * ins.passes
            pk_ok = s + 4 * ins.passes + 12
        elif k in ('dsr', 'dsw', 'vmld', 'vmst'):
            s = max(t, mem_ok)
            t = s + (ins.cost or 4)
        elif k == 'bar':
            s = t
            t = s + 12
        else:
            s = t
            n = ins.note[1] if (ins.note and ins.note[0] == 'nop') else 1
            t = s + 4 * n
        times.append(s)
    if verbose:
        print(f"; model: total {t} cycles, pk stalls {stall_pk}, mfma stalls {stall_mfma}")
    return times, t


LDS_LAT = 140


def resolve_waits(seq, loop=False, init_lds=None, init_vm=None, lds_lat=LDS_LAT, report=None):
    def one_pass(seq, lq, vq):
        times, total = simulate(seq)
        out = []
        lq = list(lq)
        vq = list(vq)
        forced = 0
        for idx, ins in enumerate(seq):
            now = times[idx]
            if ins.kind == 'autowait':
                n_recent = sum(1 for (o, ti) in lq if now - ti < lds_lat)
                if n_recent < len(lq) and n_recent <= 15:
                    out.append(wait(lgkm=n_recent))
                    lq = lq[len(lq) - n_recent:] if n_recent else []
                else:
                    out.append(None)
                continue
            if ins.kind == 'wait':
                _, vm, lg = ins.note
                if vm is not None and len(vq) > vm:
                    vq = vq[len(vq) - vm:] if vm else []
                if lg is not None and len(lq) > lg:
                    lq = lq[len(lq) - lg:] if lg else []
                out.append(ins)
                continue
            touched = ins.rd | ins.wr
            need_l = None
            for i, (o, ti) in enumerate(lq):
                if o.kind == 'dsr' and (o.wr & touched):
                    need_l = len(lq) - 1 - i
            need_v = None
            for i, (o, ti) in enumerate(vq):
                if o.kind == 'vmld' and (o.wr & touched):
                    need_v = len(vq) - 1 - i
            if ins.kind == 'bar':
                if lq:
                    need_l = 0
            if need_l is not None or need_v is not None:
                if need_l is not None:
                    need_l = min(need_l, 15)
                    lq = lq[len(lq) - need_l:] if need_l else []
                if need_v is not None:
                    need_v = min(need_v, 63)
                    vq = vq[len(vq) - need_v:] if need_v else []
                w = wait(vm=need_v, lgkm=need_l)
                w.forced = True
                out.append(w)
                forced += 1
                if report is not None:
                    report.append((ins.text, w.text))
            out.append(ins)
            if ins.kind in ('dsr', 'dsw'):
                lq.append((ins, now))
            elif ins.kind in ('vmld', 'vmst'):
                vq.append((ins, now))
        lq = [(o, ti - total) for (o, ti) in lq]
        vq = [(o, ti - total) for (o, ti) in vq]
        return [x for x in out if x is not None], lq, vq

    lq0 = init_lds or []
    vq0 = init_vm or []
    if not loop:
        return one_pass(seq, lq0, vq0)
    rep = report
    report = None
    o1, lq, vq = one_pass(seq, lq0, vq0)
    report = rep
    o2, lq2, vq2 = one_pass(seq, lq, vq)
    return o2, lq2, vq2


def verify_waits(seq, init_lds=(), init_vm=()):
    lq = list(init_lds)
    vq = list(init_vm)
    for ins in seq:
        if ins.kind == 'wait':
            _, vm, lg = ins.note
            if vm is not None and len(vq) > vm:
                vq = vq[len(vq) - vm:] if vm else []
            if lg is not None and len(lq) > lg:
                lq = lq[len(lq) - lg:] if lg else []
            continue
        touched = ins.rd | ins.wr
        for o in lq:
            if o.kind == 'dsr' and (o.wr & touched):
                raise RuntimeError(f"missing lgkm wait: {ins.text} vs {o.text}")
        for o in vq:
            if o.kind == 'vmld' and (o.wr & touched):
                raise RuntimeError(f"missing vm wait: {ins.text} vs {o.text}")
        if ins.kind == 'bar' and lq:
            raise RuntimeError("barrier with LDS ops outstanding")
        if ins.kind in ('dsr', 'dsw'):
            lq.append(ins)
        elif ins.kind in ('vmld', 'vmst'):
            vq.append(ins)
    return lq, vq


def states(ins):
    if ins.kind == 'label':
        return 0
    if ins.note and isinstance(ins.note, tuple) and ins.note[0] == 'nop':
        return ins.note[1]
    return 1


def hazard_need(p, c):
    need = 0
    isv = lambda x: x.kind in ('valu', 'trans', 'pk')
    vg = lambda s: {r for r in s if r[0] in ('v', 'a')}
    if isv(p) and c.kind == 'mfma' and (vg(p.wr) & c.rd):
        need = max(need, 2)
    if p.kind == 'mfma':
        big = {4: 8, 8: 12}[p.passes]
        if c.kind == 'mfma':
            ab = c.rd - c.srcc
            if p.wr & ab:
                need = max(need, big)
            if p.wr & c.srcc:
                if p.wr == c.srcc and p.passes == c.passes and p.text.split()[0] == c.text.split()[0]:
                    pass
                else:
                    need = max(need, {4: 8, 8: 12}[p.passes])
            elif p.wr & c.wr:
                need = max(need, {4: 6, 8: 10}[p.passes])
        elif isv(c) or c.kind in ('dsr', 'dsw', 'vmld', 'vmst'):
            if p.wr & (c.rd | c.wr):
                need = max(need, big)
        if isv(c) and (p.srcc & c.wr):
            need = max(need, {4: 3, 8: 7}[p.passes])
    if p.kind == 'trans' and isv(c) and c.kind != 'trans' and (p.wr & c.rd):
        need = max(need, 1)
    if p.kind == 'trans' and c.kind == 'trans' and (p.wr & c.rd):
        need = max(need, 1)
    if p.kind == 'vmst' and (p.note[1] & c.wr):
        need = max(need, 2)
    if p.kind == 'dsw' and isv(c) and (vg(p.rd) & c.wr):
        need = max(need, 0)
    sw = {r for r in p.wr if r[0] in ('s', 'vcc')}
    if isv(p) and sw:
        if isv(c) and (sw & c.rd):
            need = max(need, 2)
        if c.kind in ('vmld', 'vmst') and (sw & c.rd):
            need = max(need, 5)
        if c.kind == 'salu' and (sw & c.rd):
            need = max(need, 1)
    if isv(p) and c.text.startswith('v_readfirstlane') and (p.wr & c.rd):
        need = max(need, 1)
    if p.kind == 'salu' and ('m0', 0) in p.wr and ('m0', 0) in c.rd:
        need = max(need, 1)
    return need


def fix_hazards(seq, prev_tail=(), fix=True, report=None):
    hist = list(prev_tail)[-24:]
    out = []
    for ins in seq:
        if ins.kind != 'label':
            dist = 0
            short = 0
            who = None
            for p in reversed(hist):
                n = hazard_need(p, ins)
                if n - dist > short:
                    short = n - dist
                    who = p
                dist += states(p)
                if dist > 20:
                    break
            if short > 0:
                if report is not None:
                    report.append((who.text, ins.text, short))
                if not fix:
                    raise RuntimeError(f"hazard: {who.text} -> {ins.text} short by {short}")
                np_ = nop(short - 1)
                out.append(np_)
                hist.append(np_)
        out.append(ins)
        hist.append(ins)
        hist = hist[-24:]
    return out
```

```python
import math
import struct
import sys
from ir import *

NAME = "standalone__modern_conv_block_replknet__vision_kernel"
XBYTES = 384 * 384 * 96 * 2
ROWB = 384 * 192
PAIRB = 2 * ROWB
STRIPB = 32 * 192

PLANE = 288
RS = 24 * PLANE
SLOT = 2 * RS
L_RING = 0
L_ZERO = 3 * SLOT
L_STAT = L_ZERO + 1536
L_WREG = L_STAT + 2048
WREG = 24576
O_A, O_AD, O_H, O_X = 0, 12288, 15360, 18432
L_END = L_WREG + 4 * WREG
L_W1 = 0
L_W2 = 73728
L_T = 147456
L_TZ = L_T + 9600
LDS_BYTES = 157696


def f2u(x):
    return struct.unpack('<I', struct.pack('<f', x))[0]


K0 = 2.0 * math.sqrt(2.0 / math.pi) * math.log2(math.e)
K1 = K0 * 0.044715
ALPHA = K1 ** (1.0 / 3.0)
CPRIME = K0 / ALPHA
EPS = 1e-5

vBA, vBB, vBC = V(0), V(1), V(2)
vLA, vLB, vLC = V(3), V(4), V(5)
vWB, vXB, vHR, vSW, vSR, vIDX = V(6), V(7), V(8), V(9), V(10), V(11)
vGS, vWL, vGO, vT0 = V(12), V(13), V(14), V(15)
vID = V(16, 8)
vST = V(24, 16)
POOL = 40
bufB = [V(POOL + 0, 8), V(POOL + 12, 8)]
bufA = [V(POOL + 8, 4), V(POOL + 20, 4)]
vAD = V(POOL + 24, 4)
vBD = [V(POOL + 28, 2), V(POOL + 30, 2)]
vTMP = V(POOL + 32, 8)
vXR = V(POOL + 12, 12)
vACC = V(80, 24)
vH = V(104, 24)
vT = V(128, 16)
vA = [V(144, 16), V(160, 16)]
vD2 = V(176, 48)


def wfrag(i):
    return A(4 * i, 4) if i < 64 else V(224 + 4 * (i - 64), 4)


sPX, sPL, sPS, sP1, sP2, sPO = S(4, 2), S(6, 2), S(8, 2), S(10, 2), S(12, 2), S(14, 2)
srdX, srdO, srdA, srdB = S(16, 4), S(20, 4), S(24, 4), S(28, 4)
sC, sAL = S(32, 2), S(34, 2)
sLN1, sLN2 = S(36, 2), S(38, 2)
sP = [S(40), S(41), S(42)]
sOFF = [S(43 + i) for i in range(6)]
sRP4, sST4 = S(49), S(50)
sCNT = S(51)
sEST = S(52)
sEM = S(54, 2)
sMK = S(56, 2)
sW = S(58)
sT0, sT1, sT2, sT3 = S(59), S(60), S(61), S(62)
sEPS = S(63)
sTP = S(64, 2)
SCC = ('scc', 0)


def sop(op, dst, *src):
    lit = any(isinstance(x, int) and not (-16 <= x <= 64) for x in src)
    txt = lambda x: (hex(x & 0xffffffff) if isinstance(x, int) and not (-16 <= x <= 64) else str(x))
    t = f"{op} {dst}, " + ", ".join(txt(x) for x in src)
    wr = regs_of(dst) if isinstance(dst, Reg) else frozenset({(dst, 0)})
    ins = salu(t, rd=regs_of(*src), wr=wr)
    ins.nbytes = 8 if lit else 4
    return ins


def scmp(op, a, b):
    lit = isinstance(b, int) and not (-16 <= b <= 64)
    ins = salu(f"{op} {a}, {hex(b) if lit else b}", rd=regs_of(a, b))
    ins.nbytes = 8 if lit else 4
    return ins


def v2(op, dst, a, b):
    lit = isinstance(a, int) and not (-16 <= a <= 64)
    ins = I(f"{op}_e32 {dst}, {hex(a & 0xffffffff) if lit else a}, {b}", 'valu', rd=regs_of(a, b), wr=regs_of(dst))
    ins.nbytes = 8 if lit else 4
    return ins


def v1(op, dst, a):
    lit = isinstance(a, int) and not (-16 <= a <= 64)
    ins = I(f"{op}_e32 {dst}, {hex(a & 0xffffffff) if lit else a}", 'valu', rd=regs_of(a), wr=regs_of(dst))
    ins.nbytes = 8 if lit else 4
    return ins


def v3(op, dst, *src, mods=""):
    return valu(op, dst, *src, mods=mods)


def vcmp(op, dst, a, b):
    return I(f"{op}_e64 {dst}, {a}, {b}", 'valu', rd=regs_of(a, b), wr=regs_of(dst))


def tr32(op, dst, src):
    ins = I(f"{op}_e32 {dst}, {src}", 'trans', rd=regs_of(src), wr=regs_of(dst))
    ins.nbytes = 4
    return ins


def cvt(dst, a, b):
    return valu("v_cvt_pk_bf16_f32", dst, a, b)


def P1(u):
    a = vA[u % 2]
    L = [pk("v_pk_fma_f32", vT.sub(2 * i, 2), a.sub(2 * i, 2), a.sub(2 * i, 2), sC) for i in range(8)]
    L += [pk("v_pk_mul_f32", vT.sub(2 * i, 2), vT.sub(2 * i, 2), a.sub(2 * i, 2), mods="neg_lo:[1,0] neg_hi:[1,0]") for i in range(8)]
    return L


def P2():
    return [pk("v_pk_fma_f32", vT.sub(2 * i, 2), vT.sub(2 * i, 2), sAL, sAL) for i in range(8)]


def P3(u):
    a = vA[u % 2]
    return [pk("v_pk_mul_f32", a.sub(2 * i, 2), a.sub(2 * i, 2), vT.sub(2 * i, 2)) for i in range(8)]


def EXPS():
    return [tr32("v_exp_f32", vT.sub(i), vT.sub(i)) for i in range(16)]


def RCPS():
    return [tr32("v_rcp_f32", vT.sub(i), vT.sub(i)) for i in range(16)]


def CVTG(u):
    a = vA[u % 2]
    return [cvt(a.sub(i), a.sub(2 * i), a.sub(2 * i + 1)) for i in range(8)]


def GEMM1(u):
    a = vA[u % 2]
    return [mfma32(a, wfrag(u * 6 + kc), vH.sub(4 * kc, 4), a if kc else 0) for kc in range(6)]


def GEMM2(u, order=(0, 1, 2)):
    a = vA[u % 2]
    L = []
    for cc in range(2):
        for b in order:
            d = vD2.sub(16 * b, 16)
            c = 0 if (u == 0 and cc == 0 and b == 2) else d
            L.append(mfma32(d, wfrag(36 + u * 6 + cc * 3 + b), a.sub(4 * cc, 4), c))
    return L


def RESID():
    d0, d1 = vD2.sub(0, 16), vD2.sub(16, 16)
    return [mfma32(d0, vID.sub(0, 4), vXR.sub(0, 4), 0),
            mfma32(d1, vID.sub(0, 4), vXR.sub(8, 4), 0),
            mfma32(d0, vID.sub(4, 4), vXR.sub(4, 4), d0)]


def conv_reads(k):
    q, s = divmod(k, 2)
    b, a = bufB[k % 2], bufA[k % 2]
    L = [dsr("ds_read_b128", a, vWB, O_A + k * 1024)]
    if s == 0:
        L += [dsr("ds_read_b128", b.sub(0, 4), vBA, q * PLANE), dsr("ds_read_b128", b.sub(4, 4), vBA, q * PLANE + 16)]
    else:
        L += [dsr("ds_read_b128", b.sub(0, 4), vBA, q * PLANE + 32), dsr("ds_read_b128", b.sub(4, 4), vBB, q * PLANE)]
    return L


def conv_sparse(k):
    q = k // 2
    return smfmac16(vACC.sub(4 * q, 4), bufA[k % 2], bufB[k % 2], vIDX)


def dense_reads(q):
    L = []
    if q % 2 == 0:
        L.append(dsr("ds_read_b128", vAD, vWB, O_AD + (q // 2) * 1024))
    L.append(dsr("ds_read_b64", vBD[q % 2], vBC, q * PLANE))
    return L


def conv_dense(q):
    return mfma16k16(vACC.sub(4 * q, 4), vAD.sub(2 * (q % 2), 2), vBD[q % 2], 0)


S1, S2 = vTMP.sub(0, 2), vTMP.sub(2, 2)
SRD0, SRD1 = bufB[0].sub(0, 4), bufB[0].sub(4, 4)
RSSH = vTMP.sub(4, 2)


def stats_pk(q):
    p0, p1 = vACC.sub(4 * q, 2), vACC.sub(4 * q + 2, 2)
    if q == 0:
        return [pk("v_pk_add_f32", S1, p0, p1), pk("v_pk_mul_f32", S2, p0, p0), pk("v_pk_fma_f32", S2, p1, p1, S2)]
    return [pk("v_pk_add_f32", S1, S1, p0), pk("v_pk_fma_f32", S2, p0, p0, S2),
            pk("v_pk_add_f32", S1, S1, p1), pk("v_pk_fma_f32", S2, p1, p1, S2)]


def stats_fold():
    return [v2("v_add_f32", S1.sub(0), S1.sub(0), S1.sub(1)), v2("v_add_f32", S1.sub(1), S2.sub(0), S2.sub(1))]


def stats_write():
    return [dsw("ds_write_b64", vSW, S1)]


def stats_read():
    return [dsr("ds_read_b128", SRD0, vSR, 0), dsr("ds_read_b128", SRD1, vSR, 16)]


def stats_comb_pk():
    return [pk("v_pk_add_f32", S1, SRD0.sub(0, 2), SRD0.sub(2, 2)),
            pk("v_pk_add_f32", S2, SRD1.sub(0, 2), SRD1.sub(2, 2)),
            pk("v_pk_add_f32", S1, S1, S2),
            pk("v_pk_mul_f32", S1, S1, sLN1)]


def stats_scalar():
    m, e = S1.sub(0), S1.sub(1)
    return [v3("v_fma_f32", e, "-" + str(m), m, e),
            v2("v_max_f32", e, 0, e),
            v2("v_add_f32", e, sEPS, e),
            v2("v_mul_f32", m, sAL.sub(0), m),
            tr32("v_rsq_f32", RSSH.sub(0), e),
            None,
            v3("v_mul_f32_e64", RSSH.sub(1), "-" + str(m), RSSH.sub(0))]


def fix_rd(ins, *regs):
    ins.rd = ins.rd | regs_of(*regs)
    return ins


def norm_pk():
    return [pk("v_pk_fma_f32", vACC.sub(2 * i, 2), vACC.sub(2 * i, 2), RSSH, RSSH, mods="op_sel:[0,0,1] op_sel_hi:[1,0,1]")
            for i in range(12)]


def acc_cvt():
    return [cvt(vACC.sub(i), vACC.sub(2 * i), vACC.sub(2 * i + 1)) for i in range(12)]


def h_write():
    return [dsw("ds_write_b128", vWB, vACC.sub(4 * s, 4), O_H + s * 1024) for s in range(3)]


def h_read():
    return [dsr("ds_read_b128", vH.sub(4 * kc, 4), vHR, (kc // 3) * WREG + (kc % 3) * 1024) for kc in range(6)]


def exch_write():
    return [dsw("ds_write_b128", vWB, vD2.sub(24 + 4 * k, 4), O_X + k * 1024) for k in range(6)]


def exch_read():
    return [dsr("ds_read_b128", vACC.sub(4 * k, 4), vXB, k * 1024) for k in range(6)]


def exch_add():
    return [pk("v_pk_add_f32", vACC.sub(2 * i, 2), vACC.sub(2 * i, 2), vD2.sub(2 * i, 2)) for i in range(12)]


def out_store(soff):
    return [bstore(vACC.sub(4 * s, 4), vGO, srdO, soff, 16 * s) for s in range(3)]


def xres_load(soff):
    return [bload(vXR.sub(4 * s, 4), vGO, srdX, soff, 384 + 16 * s) for s in range(3)]


def stage_write(src, addr):
    L = []
    for j in range(4):
        for i in range(2):
            L.append(dsw("ds_write_b64", addr, src.sub(4 * j + 2 * i, 2), (6 * j + i) * PLANE))
    return L


def stage_load(dst, voff, soff):
    return [bload(dst.sub(4 * j, 4), voff, srdX, soff, 48 * j) for j in range(4)]


vHH = vT0


def base_update():
    return [sop("s_sub_u32", sT1, sP[1], sP[0]),
            v2("v_add_u32", vBA, sP[0], vLA), v2("v_add_u32", vBB, sP[2], vLB), v2("v_add_u32", vBC, sP[2], vLC),
            v3("v_mad_i32_i24", vBA, vHH, sT1, vBA)]


def border_fix():
    return [scmp("s_cmp_eq_u32", sT0, 1), raw("s_cselect_b32 exec_lo, -1, 0"), raw("s_mov_b32 exec_hi, 0"),
            v1("v_mov_b32", vBA, L_ZERO), scmp("s_cmp_eq_u32", sT0, 0), raw("s_cselect_b64 exec, -1, 0"),
            v1("v_mov_b32", vBB, L_ZERO), v1("v_mov_b32", vBC, L_ZERO), raw("s_mov_b64 exec, -1")]


def np_phase(ops, valu_list, pre=(), tail=44):
    out = list(pre)
    vl = [x for x in valu_list]
    cost = lambda x: 8 if x.kind == 'trans' else 4

    def memcost(m, sh, mem):
        c = 4 + 4 * len(sh)
        if mem:
            c = max(c, 8) + sum(x.cost or (12 if x.kind == 'bar' else 4) for x in mem)
        return max(c, m.blk)

    n = len(ops)
    need = []
    for i, (m, sh, mem) in enumerate(ops):
        busy = 4 * m.passes + (8 if m.note == 'legacy' else 0)
        if i == n - 1:
            busy = 4 * m.passes + 12 if tail else 0
        need.append(max(0, busy - memcost(m, sh, mem)))
    total_v = sum(cost(x) for x in vl)
    extra = max(0, total_v - sum(need))
    acc_target = 0
    acc = 0
    for i, (m, sh, mem) in enumerate(ops):
        rd = set(m.rd)
        for x in mem:
            rd |= x.rd
        last = -1
        for k, x in enumerate(vl):
            if x.wr & rd:
                last = k
        if last >= 0:
            print(f"note: flushed {last + 1} valu before {m.text}", file=sys.stderr)
            for x in vl[:last + 1]:
                out.append(x)
                acc += cost(x)
            vl = vl[last + 1:]
        out.append(m)
        out += sh
        out += mem
        acc_target += need[i] + extra / n
        if i == n - 1:
            out += vl
            vl = []
        else:
            got = 0
            rest_need = sum(need[i + 1:])
            while vl and (got < need[i] or acc + cost(vl[0]) / 2 <= acc_target):
                rem = sum(cost(x) for x in vl) - cost(vl[0])
                if got >= need[i] and rem < rest_need:
                    break
                x = vl.pop(0)
                out.append(x)
                got += cost(x)
                acc += cost(x)
    return out


AW = lambda: [AutoWait()]


def plain(ms):
    return [(m, AW(), []) for m in ms]


def merge(a, b):
    out = []
    na, nb = len(a), len(b)
    i = j = 0
    while i < na or j < nb:
        if j >= nb or (i < na and i * nb <= j * na):
            out.append(a[i]); i += 1
        else:
            out.append(b[j]); j += 1
    return out


def scalar_updates():
    G = []
    for i in range(5):
        G.append(sop("s_mov_b32", sOFF[i], sOFF[i + 1]))
    return G


def loop_body():
    B = []
    B += P3(5) + P1(0)
    cg = CVTG(5)
    g2 = GEMM2(5, order=(2, 1, 0))
    bu = base_update()
    ops = plain(g2)
    ops[0] = (g2[0], [bu[0]], [])
    B += np_phase(ops, cg[4:] + bu[1:] + EXPS(), pre=cg[:4])
    B += P2()
    g1 = GEMM1(1)
    ew, er = exch_write(), exch_read()
    ops = [(g1[0], [], ew[0:2]), (g1[1], [], ew[2:4]), (g1[2], [], ew[4:6]), (g1[3], [], []),
           (g1[4], [], [bar()] + er), (g1[5], [], [])]
    B += np_phase(ops, RCPS())
    B += [sop("s_sub_u32", sT0, sRP4, 2), scmp("s_cmp_lt_u32", sT0, 2), raw("s_cbranch_scc1 L_border"), label("L_border_ret")]
    B += P3(0) + P1(1) + exch_add()
    cg = CVTG(0)
    rs = RESID()
    g2 = GEMM2(0)
    oc = acc_cvt()
    st = out_store(sOFF[0])
    ops = [(rs[0], AW(), []), (rs[1], [], conv_reads(0)), (rs[2], [], dense_reads(0) + dense_reads(1)),
           (g2[0], [], conv_reads(1)), (g2[1], AW(), []), (g2[2], [], []), (g2[3], [], []), (g2[4], [], st),
           (g2[5], [sop("s_mov_b32", srdO.sub(2), XBYTES)], [])]
    B += np_phase(ops, cg + oc + EXPS())
    B += P2()
    g1 = GEMM1(2)
    ops = [(g1[0], AW(), []), (conv_dense(0), [], []), (g1[1], AW(), []), (conv_sparse(0), [], conv_reads(2)),
           (g1[2], AW(), []), (conv_sparse(1), [], conv_reads(3)), (g1[3], AW(), []), (conv_dense(1), [], []),
           (g1[4], AW(), dense_reads(2) + dense_reads(3)), (conv_sparse(2), [], conv_reads(4)), (g1[5], AW(), [])]
    B += np_phase(ops, RCPS())
    B += P3(1) + P1(2) + stats_pk(0)
    cg = CVTG(1)
    g2 = GEMM2(1)
    ops = [(conv_sparse(3), [], conv_reads(5)), (g2[0], AW(), []), (g2[1], AW(), []), (conv_dense(2), [], []),
           (g2[2], AW(), []), (conv_sparse(4), [], conv_reads(6)), (g2[3], AW(), []), (g2[4], AW(), []), (g2[5], AW(), [])]
    B += np_phase(ops, EXPS()[:0] + cg[4:] + EXPS(), pre=cg[:4])
    B += P2() + stats_pk(1)
    g1 = GEMM1(3)
    ops = [(g1[0], AW(), []), (conv_sparse(5), [], conv_reads(7)), (g1[1], AW(), []), (conv_dense(3), [], []),
           (g1[2], AW(), dense_reads(4) + dense_reads(5)), (conv_sparse(6), [], conv_reads(8)), (g1[3], AW(), []),
           (g1[4], AW(), []), (conv_sparse(7), [], conv_reads(9)), (g1[5], AW(), [])]
    B += np_phase(ops, RCPS())
    B += P3(2) + P1(3) + stats_pk(2) + stats_pk(3)
    cg = CVTG(2)
    g2 = GEMM2(2)
    ops = [(conv_dense(4), [], []), (g2[0], AW(), []), (conv_sparse(8), [], conv_reads(10)), (g2[1], AW(), []),
           (conv_sparse(9), [], conv_reads(11)), (g2[2], AW(), []), (conv_dense(5), [], []), (g2[3], AW(), []),
           (conv_sparse(10), [], []), (g2[4], AW(), []), (conv_sparse(11), [], []), (g2[5], AW(), [])]
    B += np_phase(ops, cg[4:] + EXPS(), pre=cg[:4])
    B += P2() + stats_pk(4) + stats_pk(5)
    g1 = GEMM1(4)
    su = scalar_updates()
    ops = [(g1[0], [su[0]], []), (g1[1], [su[1]], stats_write()), (g1[2], [su[2]], []), (g1[3], [], [bar()] + stats_read()),
           (g1[4], [su[3]], []), (g1[5], [su[4]], [])]
    B += np_phase(ops, stats_fold() + RCPS())
    B += P3(3) + P1(4) + stats_comb_pk()
    cg = CVTG(3)
    g2 = GEMM2(3)
    sc = [x for x in stats_scalar() if x is not None]
    fix_rd(sc[0], S1.sub(0))
    fix_rd(sc[5], S1.sub(0))
    ex = EXPS()
    trk = [sop("s_add_u32", sRP4, sRP4, 1), scmp("s_cmp_eq_u32", sRP4, 192), sop("s_cselect_b32", sT1, sT2, sT3),
           sop("s_cselect_b32", sRP4, 0, sRP4), sop("s_addc_u32", sST4, sST4, 0), sop("s_add_u32", sOFF[5], sOFF[5], sT1)]
    ops = [(g2[i], [], []) for i in range(6)]
    B += np_phase(ops, cg[4:] + sc[:5] + ex[:2] + sc[5:] + ex[2:], pre=cg[:4])
    B += P2() + norm_pk()
    g1 = GEMM1(5)
    hw = h_write()
    ac = acc_cvt()
    ops = [(g1[0], [], []), (g1[1], [], []), (g1[2], [], hw[0:2]), (g1[3], [], hw[2:3]), (g1[4], [], []),
           (g1[5], [], [bar()])]
    B += np_phase(ops, ac + RCPS())
    B += P3(4) + P1(5)
    cg = CVTG(4)
    g2 = GEMM2(4)
    hr = h_read()
    mk = [scmp("s_cmp_eq_u32", sST4, sEST), sop("s_cselect_b64", sMK, sEM, 0), scmp("s_cmp_le_u32", sCNT, 3),
          sop("s_cselect_b64", sMK, -1, sMK)]
    ops = [(g2[0], [mk[0]], hr[0:3]), (g2[1], [mk[1]], hr[3:6]), (g2[2], [mk[2]], xres_load(sOFF[1])), (g2[3], [mk[3]], []),
           (g2[4], AW(), []), (g2[5], AW(), [])]
    wa = v2("v_add_u32", vTMP.sub(6), sP[0], vWL)
    B += np_phase(ops, cg[4:] + [wa] + EXPS(), pre=cg[:4])
    B += P2()
    g1 = GEMM1(0)
    sw = stage_write(vST, vTMP.sub(6))
    cm = I(f"v_cndmask_b32_e64 {vTMP.sub(7)}, {vGS}, 4.0, {sMK}", 'valu', rd=regs_of(vGS, sMK), wr=regs_of(vTMP.sub(7)))
    sl = stage_load(vST, vTMP.sub(7), sOFF[4])
    rot = [sop("s_mov_b32", sT0, sP[0]), sop("s_mov_b32", sP[0], sP[1]), sop("s_mov_b32", sP[1], sP[2]), sop("s_mov_b32", sP[2], sT0)]
    ops = [(g1[0], [rot[0]], sw[0:2]), (g1[1], [rot[1]], sw[2:4]), (g1[2], [rot[2]], sw[4:6]), (g1[3], [rot[3]], sw[6:8]),
           (g1[4], [], sl), (g1[5], trk, [])]
    B += np_phase(ops, [cm] + RCPS())
    B += [sop("s_sub_u32", sCNT, sCNT, 1), scmp("s_cmp_lg_u32", sCNT, 0), raw("s_cbranch_scc1 L_loop")]
    return B


def tail_code():
    B = []
    B += P3(5)
    cg = CVTG(5)
    g2 = GEMM2(5, order=(2, 1, 0))
    B += cg + g2
    B += exch_write() + [bar()] + exch_read() + exch_add() + acc_cvt() + out_store(sOFF[0])
    return B


import os
DBG = os.environ.get("DBG", "")
srdD = S(76, 4)
dbg_slot = [0]


def dump(reg, tidreg):
    L = [nop(15), nop(7)]
    base = dbg_slot[0] * 65536
    dbg_slot[0] += 1
    for i in range(reg.n):
        L.append(sop("s_mov_b32", S(80), base + i * 1024))
        L.append(bstore(reg.sub(i), tidreg, srdD, S(80)))
    L.append(wait(vm=0))
    return L


def prologue():
    B = []
    e = B.append
    lane, wv = V(200), V(201)
    t = [V(202 + i) for i in range(20)]
    e(raw("s_cmp_ge_u32 s2, 0x100", 8))
    e(raw("s_cbranch_scc1 L_end"))
    e(raw("s_load_dwordx8 s[4:11], s[0:1], 0x0", 8))
    e(raw("s_load_dwordx4 s[12:15], s[0:1], 0x20", 8))
    e(raw("s_getpc_b64 s[64:65]"))
    e(label("L_pc"))
    e(v2("v_and_b32", lane, 63, V(0)))
    e(v2("v_lshrrev_b32", wv, 6, V(0)))
    e(v2("v_lshlrev_b32", t[0], 6, V(0)))
    e(I(f"global_load_dword {t[1]}, {t[0]}, s[64:65]", 'vmld', rd=regs_of(t[0]), wr=regs_of(t[1])))
    e(I(f"v_readfirstlane_b32 {sW}, {wv}", 'valu', rd=regs_of(wv), wr=regs_of(sW), nbytes=4))
    e(sop("s_and_b32", sT0, S(2), 7))
    e(sop("s_lshl_b32", sT0, sT0, 5))
    e(sop("s_lshr_b32", sT1, S(2), 3))
    e(sop("s_add_u32", sT0, sT0, sT1))
    e(sop("s_mul_i32", sT0, sT0, 9))
    sG = S(66)
    strips = [S(68 + i) for i in range(6)]
    for i in range(6):
        e(sop("s_add_i32", sG, sT0, i - 1))
        if i == 0:
            e(sop("s_max_i32", sG, sG, 0))
        e(sop("s_mul_i32", strips[i], sG, 21846))
        e(sop("s_lshr_b32", strips[i], strips[i], 22))
        e(sop("s_mul_i32", sT1, strips[i], 192))
        e(sop("s_sub_u32", sRP4, sG, sT1))
        e(sop("s_mul_i32", sT1, sRP4, PAIRB))
        e(sop("s_mul_i32", sT2, strips[i], STRIPB))
        e(sop("s_add_u32", sOFF[i], sT1, sT2))
    e(sop("s_mov_b32", sST4, strips[5]))
    px, r3 = t[2], t[3]
    e(v2("v_min_u32", t[4], 53, lane))
    e(v2("v_mul_u32_u24", px, 86, t[4]))
    e(v2("v_lshrrev_b32", px, 8, px))
    e(v2("v_mul_u32_u24", r3, 3, px))
    e(v2("v_sub_u32", r3, t[4], r3))
    e(sop("s_and_b32", sT1, sW, 1))
    e(sop("s_lshr_b32", sT2, sW, 1))
    e(sop("s_mul_i32", sT3, sT1, 18))
    e(v2("v_add_u32", px, sT3, px))
    e(v2("v_mul_u32_u24", vGS, 192, px))
    e(v3("v_lshl_add_u32", vGS, r3, 4, vGS))
    e(sop("s_mul_i32", sT3, sT2, ROWB))
    e(v2("v_add_u32", vGS, sT3, vGS))
    e(v2("v_mul_u32_u24", vWL, 2 * PLANE, r3))
    e(v3("v_lshl_add_u32", vWL, px, 3, vWL))
    e(sop("s_mul_i32", sT3, sT2, RS))
    e(v2("v_add_u32", vWL, sT3, vWL))
    e(v2("v_subrev_u32", t[4], 2, px))
    e(vcmp("v_cmp_le_u32", sEM, 32, t[4]))
    e(sop("s_mul_i32", sEST, sT1, 11))
    if DBG:
        e(raw("s_load_dwordx2 s[76:77], s[0:1], 0x38", 8))
        e(v2("v_lshlrev_b32", V(199), 2, V(0)))
        e(scmp("s_cmp_eq_u32", S(2), 0))
        e(sop("s_cselect_b32", S(78), 0x1000000, 0))
        e(sop("s_mov_b32", S(79), 0x20000))
    e(wait(lgkm=0))
    e(sop("s_sub_u32", srdX.sub(0), sPX.sub(0), 384))
    e(sop("s_subb_u32", srdX.sub(1), sPX.sub(1), 0))
    e(sop("s_mov_b32", srdX.sub(2), XBYTES + 384))
    e(sop("s_mov_b32", srdX.sub(3), 0x20000))
    e(sop("s_mov_b32", srdA.sub(0), sPS.sub(0)))
    e(sop("s_mov_b32", srdA.sub(1), sPS.sub(1)))
    e(sop("s_mov_b32", srdA.sub(2), 4800))
    e(sop("s_mov_b32", srdA.sub(3), 0x20000))
    e(sop("s_mov_b32", srdB.sub(0), sPL.sub(0)))
    e(sop("s_mov_b32", srdB.sub(1), sPL.sub(1)))
    e(sop("s_mov_b32", srdB.sub(2), 1728))
    e(sop("s_mov_b32", srdB.sub(3), 0x20000))
    dS = [V(224, 4), V(228, 4)]
    dL = [V(232, 4), V(236, 4)]
    itm = [t[5], t[6]]
    for r in range(2):
        it = itm[r]
        if r == 0:
            e(v1("v_mov_b32", it, V(0)))
        else:
            e(v2("v_add_u32", it, 256, V(0)))
        tap, oc, ty, tx = t[7], t[8], t[9], t[10]
        e(v2("v_mul_u32_u24", tap, 1366, it))
        e(v2("v_lshrrev_b32", tap, 14, tap))
        e(v2("v_mul_u32_u24", oc, 12, tap))
        e(v2("v_sub_u32", oc, it, oc))
        e(v2("v_lshlrev_b32", t[11], 4, it))
        e(bload(dS[r], t[11], srdA, 0))
        e(v2("v_mul_u32_u24", ty, 52, tap))
        e(v2("v_lshrrev_b32", ty, 8, ty))
        e(v2("v_mul_u32_u24", tx, 5, ty))
        e(v2("v_sub_u32", tx, tap, tx))
        e(v2("v_subrev_u32", ty, 1, ty))
        e(v2("v_subrev_u32", tx, 1, tx))
        e(v2("v_max_u32", t[12], ty, tx))
        e(vcmp("v_cmp_gt_u32", sTP, 3, t[12]))
        e(v2("v_mul_u32_u24", ty, 576, ty))
        e(v2("v_mul_u32_u24", tx, 192, tx))
        e(v2("v_lshlrev_b32", oc, 4, oc))
        e(v3("v_add3_u32", t[12], ty, tx, oc))
        e(I(f"v_cndmask_b32_e64 {t[12]}, 4.0, {t[12]}, {sTP}", 'valu', rd=regs_of(t[12], sTP), wr=regs_of(t[12])))
        e(bload(dL[r], t[12], srdB, 0))
    xs = [V(104 + 16 * i, 16) for i in range(4)] + [vST]
    for i in range(5):
        e(scmp("s_cmp_eq_u32", strips[i], sEST))
        e(sop("s_cselect_b64", sMK, sEM, 0))
        vo = t[13 + i]
        e(I(f"v_cndmask_b32_e64 {vo}, {vGS}, 4.0, {sMK}", 'valu', rd=regs_of(vGS, sMK), wr=regs_of(vo)))
        if i < 3:
            B.extend(stage_load(xs[i], vo, sOFF[i]))
    e(sop("s_mov_b32", srdA.sub(0), sP1.sub(0)))
    e(sop("s_mov_b32", srdA.sub(1), sP1.sub(1)))
    e(sop("s_mov_b32", srdA.sub(2), 73728))
    e(sop("s_mov_b32", srdB.sub(0), sP2.sub(0)))
    e(sop("s_mov_b32", srdB.sub(1), sP2.sub(1)))
    e(sop("s_mov_b32", srdB.sub(2), 73728))
    w1o = [t[7], t[8], t[9]]
    for p in range(3):
        U, row = t[10], t[11]
        e(v2("v_add_u32", U, 64 * p, lane))
        e(v2("v_mul_u32_u24", row, 1366, U))
        e(v2("v_lshrrev_b32", row, 16, row))
        e(v2("v_lshlrev_b32", row, 2, row))
        e(v2("v_xor_b32", U, row, lane))
        e(v2("v_lshlrev_b32", w1o[p], 4, U))
    l16 = t[12]
    e(v2("v_lshlrev_b32", l16, 4, lane))
    e(sop("s_mul_i32", sT1, sW, 18432))
    for grp in range(6):
        e(sop("s_add_u32", sT2, sT1, grp * 3072))
        e(sop("s_mov_b32", "m0", sT2))
        e(nop())
        for p in range(3):
            e(bload_lds(w1o[p], srdA, sT2, p * 1024))
    for grp in range(6):
        e(sop("s_add_u32", sT2, sT1, grp * 3072))
        e(sop("s_add_u32", sT3, sT2, L_W2))
        e(sop("s_mov_b32", "m0", sT3))
        e(nop())
        for p in range(3):
            e(bload_lds(l16, srdB, sT2, p * 1024))
    B.extend(stage_load(xs[3], t[16], sOFF[3]))
    B.extend(stage_load(xs[4], t[17], sOFF[4]))
    e(sop("s_mov_b32", srdO.sub(0), sPO.sub(0)))
    e(sop("s_mov_b32", srdO.sub(1), sPO.sub(1)))
    e(sop("s_mov_b32", srdO.sub(2), 0))
    e(sop("s_mov_b32", srdO.sub(3), 0x20000))
    e(sop("s_mov_b32", sC.sub(0), f2u(CPRIME)))
    e(sop("s_mov_b32", sC.sub(1), f2u(CPRIME)))
    e(sop("s_mov_b32", sAL.sub(0), f2u(ALPHA)))
    e(sop("s_mov_b32", sAL.sub(1), f2u(ALPHA)))
    e(sop("s_mov_b32", sLN1.sub(0), f2u(1.0 / (96 * ALPHA))))
    e(sop("s_mov_b32", sLN1.sub(1), f2u(1.0 / (96 * ALPHA * ALPHA))))
    e(sop("s_mov_b32", sEPS, f2u(EPS / (ALPHA * ALPHA))))
    e(sop("s_mov_b32", sCNT, 9))
    n16, g4, n32, hh = t[7], t[8], t[9], t[10]
    e(v2("v_and_b32", n16, 15, lane))
    e(v2("v_lshrrev_b32", g4, 4, lane))
    e(v2("v_and_b32", n32, 31, lane))
    e(v2("v_lshrrev_b32", hh, 5, lane))
    g0b = t[11]
    e(v2("v_and_b32", g0b, 1, g4))
    e(sop("s_mul_i32", sT1, sW, 6 * PLANE))
    e(v2("v_mul_u32_u24", vLA, RS, g0b))
    e(v3("v_lshl_add_u32", vLA, n16, 4, vLA))
    e(v2("v_add_u32", vLA, sT1, vLA))
    e(v3("v_lshl_add_u32", vLB, hh, 4, vLA))
    e(v2("v_mul_u32_u24", vLC, RS, hh))
    e(v3("v_lshl_add_u32", vLC, n16, 4, vLC))
    e(v3("v_lshl_add_u32", vLC, g0b, 3, vLC))
    e(sop("s_add_u32", sT1, sT1, 32))
    e(v2("v_add_u32", vLC, sT1, vLC))
    e(sop("s_mul_i32", sT1, sW, WREG))
    e(sop("s_add_u32", sT1, sT1, L_WREG))
    e(v2("v_add_u32", vWB, sT1, l16))
    e(sop("s_xor_b32", sT2, sW, 1))
    e(sop("s_mul_i32", sT2, sT2, WREG))
    e(sop("s_add_u32", sT2, sT2, L_WREG + O_X))
    e(v2("v_add_u32", vXB, sT2, l16))
    e(sop("s_lshr_b32", sT2, sW, 1))
    e(sop("s_and_b32", sT3, sW, 1))
    e(sop("s_lshl_b32", sT1, sT2, 9))
    e(sop("s_add_u32", sT1, sT1, L_WREG + O_H))
    e(v2("v_mul_u32_u24", vHR, 2 * WREG, hh))
    e(v3("v_lshl_add_u32", vHR, n32, 4, vHR))
    e(v2("v_add_u32", vHR, sT1, vHR))
    e(v2("v_lshlrev_b32", vSR, 5, lane))
    e(v2("v_add_u32", vSR, L_STAT, vSR))
    e(sop("s_lshl_b32", sT1, sW, 3))
    e(v2("v_add_u32", vSW, sT1, vSR))
    c4 = t[13]
    e(v2("v_and_b32", c4, 3, lane))
    e(v2("v_mul_u32_u24", vIDX, 0x5555, c4))
    e(v3("v_lshl_add_u32", vGO, n16, 1, g0b))
    e(v2("v_mul_u32_u24", vGO, 192, vGO))
    e(v3("v_mad_u32_u24", vGO, hh, 48, vGO))
    e(sop("s_mul_i32", sT1, sT2, ROWB))
    e(sop("s_mul_i32", S(66), sT3, 96))
    e(sop("s_add_u32", sT1, sT1, S(66)))
    e(v2("v_add_u32", vGO, sT1, vGO))
    e(v1("v_mov_b32", vHH, hh))
    ee, one = t[14], t[15]
    e(v3("v_bfe_u32", ee, lane, 3, 1))
    e(v3("v_lshl_add_u32", ee, ee, 2, c4))
    e(v3("v_lshl_add_u32", ee, g0b, 3, ee))
    e(v3("v_bfe_u32", one, lane, 2, 1))
    e(v2("v_xor_b32", one, one, hh))
    e(v3("v_lshl_add_u32", ee, one, 5, ee))
    e(v2("v_and_b32", one, 1, ee))
    e(v2("v_lshlrev_b32", one, 4, one))
    e(v1("v_mov_b32", t[16], 0x3f80))
    e(v2("v_lshlrev_b32", one, one, t[16]))
    e(v2("v_lshrrev_b32", ee, 1, ee))
    for r in range(8):
        e(vcmp("v_cmp_eq_u32", sTP, r, ee))
        e(I(f"v_cndmask_b32_e64 {vID.sub(r)}, 0, {one}, {sTP}", 'valu', rd=regs_of(one, sTP), wr=regs_of(vID.sub(r))))
    sel_lo, sel_hi = S(66), S(67)
    e(sop("s_mov_b32", sel_lo, 0x05040100))
    e(sop("s_mov_b32", sel_hi, 0x07060302))
    tb = V(240, 8)
    for r in range(2):
        for d in range(4):
            e(v3("v_perm_b32", tb.sub(2 * d), dL[r].sub(d), dS[r].sub(d), sel_lo))
            e(v3("v_perm_b32", tb.sub(2 * d + 1), dL[r].sub(d), dS[r].sub(d), sel_hi))
        ad = t[16]
        e(v2("v_min_u32", ad, 303, itm[r]))
        e(v2("v_lshlrev_b32", ad, 5, ad))
        e(v2("v_add_u32", ad, L_T, ad))
        e(dsw("ds_write_b128", ad, tb.sub(0, 4), 0))
        e(dsw("ds_write_b128", ad, tb.sub(4, 4), 16))
    e(bar())
    AF = V(40, 48)
    AD = V(88, 12)
    dy, dx, ry, cx, cb = t[14], t[15], t[16], t[17], t[18]
    e(v3("v_bfe_u32", dy, lane, 3, 1))
    e(v3("v_bfe_u32", dx, lane, 2, 1))
    e(sop("s_mul_i32", sT1, sW, 96))
    e(sop("s_add_u32", sT1, sT1, L_T))
    e(v3("v_lshl_add_u32", cb, c4, 2, sT1))
    zt = t[19]
    e(v1("v_mov_b32", zt, L_TZ))
    ga = [V(224 + i) for i in range(12)]

    def tap_addr(dst, ry, cx, ay, ax, tmp):
        e(v2("v_add_u32", tmp[0], ay, ry))
        e(v2("v_add_u32", tmp[1], ax, cx))
        e(v2("v_max_u32", dst, tmp[0], tmp[1]))
        e(vcmp("v_cmp_gt_u32", sTP, 5, dst))
        e(v3("v_mad_u32_u24", tmp[0], tmp[0], 5, tmp[1]))
        e(v2("v_mul_u32_u24", tmp[0], 384, tmp[0]))
        e(v2("v_add_u32", tmp[0], tmp[0], cb))
        e(I(f"v_cndmask_b32_e64 {dst}, {zt}, {tmp[0]}, {sTP}", 'valu', rd=regs_of(zt, tmp[0], sTP), wr=regs_of(dst)))

    tmp = [ga[10], ga[11]]
    a2 = ga[9]
    e(v2("v_lshlrev_b32", a2, 1, g0b))
    e(v2("v_sub_u32", ry, a2, dy))
    e(v2("v_lshlrev_b32", cx, 1, hh))
    e(v2("v_sub_u32", cx, cx, dx))
    for j in range(4):
        tap_addr(ga[j], ry, cx, j >> 1, j & 1, tmp)
        for q in range(6):
            e(dsr("ds_read_b32", AF.sub(8 * q + j), ga[j], 16 * q))
    e(vcmp("v_cmp_eq_u32", sTP, 0, hh))
    e(I(f"v_cndmask_b32_e64 {ry}, 4, {a2}, {sTP}", 'valu', rd=regs_of(a2, sTP), wr=regs_of(ry)))
    e(I(f"v_cndmask_b32_e64 {cx}, {a2}, 4, {sTP}", 'valu', rd=regs_of(a2, sTP), wr=regs_of(cx)))
    e(v2("v_sub_u32", ry, ry, dy))
    e(v2("v_sub_u32", cx, cx, dx))
    for j in range(4):
        tap_addr(ga[4 + j], ry, cx, j >> 1, j & 1, tmp)
        for q in range(6):
            e(dsr("ds_read_b32", AF.sub(8 * q + 4 + j), ga[4 + j], 16 * q))
    e(v2("v_sub_u32", ry, hh, dy))
    e(v2("v_sub_u32", cx, g0b, dx))
    tap_addr(ga[8], ry, cx, 4, 4, tmp)
    dn = [V(240 + q) for q in range(6)]
    for q in range(6):
        e(dsr("ds_read_b32", dn[q], ga[8], 16 * q))
    sh = ry
    e(v2("v_and_b32", sh, 1, lane))
    e(v2("v_lshlrev_b32", sh, 4, sh))
    e(vcmp("v_cmp_gt_u32", sTP, 2, c4))
    for q in range(6):
        e(v2("v_lshlrev_b32", tmp[0], 16, dn[q]))
        e(v2("v_and_b32", tmp[1], 0xffff0000, dn[q]))
        e(v2("v_add_f32", tmp[0], tmp[0], tmp[1]))
        e(valu("v_cvt_pk_bf16_f32", tmp[0], tmp[0], 0))
        e(v2("v_lshlrev_b32", tmp[0], sh, tmp[0]))
        e(I(f"v_cndmask_b32_e64 {AD.sub(2 * q)}, 0, {tmp[0]}, {sTP}", 'valu', rd=regs_of(tmp[0], sTP), wr=regs_of(AD.sub(2 * q))))
        e(I(f"v_cndmask_b32_e64 {AD.sub(2 * q + 1)}, {tmp[0]}, 0, {sTP}", 'valu', rd=regs_of(tmp[0], sTP), wr=regs_of(AD.sub(2 * q + 1))))
    r4, c1, c2 = t[14], t[15], t[16]
    e(v3("v_bfe_u32", r4, lane, 2, 2))
    e(v2("v_and_b32", c1, 1, lane))
    e(v3("v_bfe_u32", c2, lane, 1, 1))
    a1 = [V(176 + u) for u in range(6)]
    a2r = [V(182 + b) for b in range(3)]
    rowb, un, xr = t[17], t[18], t[19]
    e(v3("v_mad_u32_u24", rowb, hh, 48, r4))
    e(v2("v_mul_u32_u24", rowb, 768, rowb))
    e(v3("v_lshl_add_u32", rowb, c1, 3, rowb))
    e(v3("v_lshl_add_u32", un, g0b, 1, c2))
    e(sop("s_mul_i32", sT1, sT3, 24))
    e(v2("v_add_u32", un, sT1, un))
    e(v2("v_lshlrev_b32", xr, 2, r4))
    for u in range(6):
        e(v2("v_add_u32", a1[u], 4 * u, un))
        e(v2("v_xor_b32", a1[u], a1[u], xr))
        e(v3("v_lshl_add_u32", a1[u], a1[u], 4, rowb))
    e(v3("v_lshl_add_u32", rowb, hh, 2, r4))
    e(v2("v_mul_u32_u24", rowb, 192, rowb))
    e(sop("s_mul_i32", sT1, sT3, 192 * 192))
    e(sop("s_add_u32", sT1, sT1, L_W2))
    e(v2("v_add_u32", rowb, sT1, rowb))
    e(v3("v_mad_u32_u24", rowb, c1, 48, rowb))
    e(v3("v_lshl_add_u32", rowb, g0b, 4, rowb))
    e(v3("v_lshl_add_u32", rowb, c2, 3, rowb))
    e(sop("s_mul_i32", sT1, sT3, 96))
    e(sop("s_sub_u32", sT2, 48, sT1))
    e(v2("v_add_u32", a2r[0], sT1, rowb))
    e(v2("v_add_u32", a2r[2], sT2, rowb))
    e(vcmp("v_cmp_eq_u32", sTP, 0, g0b))
    e(I(f"v_cndmask_b32_e64 {a2r[1]}, {a2r[2]}, {a2r[0]}, {sTP}", 'valu', rd=regs_of(a2r[0], a2r[2], sTP), wr=regs_of(a2r[1])))
    e(wait(vm=8))
    e(bar())
    for u in range(6):
        for kc in range(6):
            for tau in range(2):
                e(dsr("ds_read_b64_tr_b16", wfrag(u * 6 + kc).sub(2 * tau, 2), a1[u], (8 * kc + 4 * tau) * 768))
    for u in range(6):
        for cc in range(2):
            for b in range(3):
                for tau in range(2):
                    e(dsr("ds_read_b64_tr_b16", wfrag(36 + u * 6 + cc * 3 + b).sub(2 * tau, 2), a2r[b],
                          (32 * u + 16 * cc + 8 * tau) * 192 + 32 * b))
    zr = V(188, 4)
    for i in range(4):
        e(v1("v_mov_b32", zr.sub(i), 0))
    e(sop("s_lshl_b32", sT1, sT3, 9))
    e(sop("s_add_u32", sT1, sT1, L_ZERO))
    e(v2("v_add_u32", t[14], sT1, l16))
    for i in range(3):
        e(sop("s_mov_b32", sP[i], i * SLOT))
    e(bar())
    for i in range(3):
        e(v2("v_add_u32", t[15 + i], i * SLOT, vWL))
        B.extend(stage_write(xs[i], t[15 + i]))
    e(dsw("ds_write_b128", t[14], zr))
    for k in range(12):
        e(dsw("ds_write_b128", vWB, AF.sub(4 * k, 4), O_A + k * 1024))
    for k in range(3):
        e(dsw("ds_write_b128", vWB, AD.sub(4 * k, 4), O_AD + k * 1024))
    B.extend(base_update())
    e(sop("s_sub_u32", sT0, sRP4, 3))
    B.extend(border_fix())
    e(bar())
    B.extend(conv_reads(0) + conv_reads(1))
    for q in range(6):
        B.extend(dense_reads(q))
        e(conv_dense(q))
        for s in range(2):
            k = 2 * q + s
            e(conv_sparse(k))
            if k + 2 < 12:
                B.extend(conv_reads(k + 2))
    if DBG:
        B.extend(dump(vACC, V(199)))
    B.extend(xres_load(sOFF[1]))
    for q in range(6):
        B.extend(stats_pk(q))
    B.extend(stats_fold() + stats_write())
    e(bar())
    B.extend(stats_read())
    B.extend(stage_write(xs[3], vWL))
    B.extend(stats_comb_pk())
    sc = [x for x in stats_scalar() if x is not None]
    fix_rd(sc[0], S1.sub(0))
    fix_rd(sc[5], S1.sub(0))
    B.extend(sc + norm_pk() + acc_cvt() + h_write())
    for i in range(3):
        e(sop("s_mov_b32", sP[i], ((i + 1) % 3) * SLOT))
    e(sop("s_mov_b32", sT2, (STRIPB - 191 * PAIRB) & 0xffffffff))
    e(sop("s_mov_b32", sT3, PAIRB))
    e(bar())
    B.extend(h_read())
    B.extend(GEMM1(0))
    if DBG:
        B.extend(dump(vH, V(199)))
        B.extend(dump(vA[0], V(199)))
        B.extend(dump(A(0, 64), V(199)))
        B.extend(dump(A(144, 64), V(199)))
        B.extend(dump(V(0, 64), V(199)))
    e(wait(vm=0))
    return B


def align_pk(seq, start):
    out = list(seq)
    skip = set()
    for _ in range(400):
        addr = start
        bad = None
        for i, ins in enumerate(out):
            if ins.kind == 'pk' and addr % 8 and (i == 0 or out[i - 1].kind != 'pk') and i not in skip:
                bad = i
                break
            addr += ins.nbytes
        if bad is None:
            return out
        j = bad - 1
        while j >= 0 and out[j].kind != 'pk' and not (out[j].kind == 'trans' and out[j].nbytes == 4):
            j -= 1
        if j < 0 or out[j].kind == 'pk':
            print(f"warning: misaligned pk run at {out[bad].text}", file=sys.stderr)
            skip.add(bad)
            continue
        o = out[j]
        n = I(o.text.replace("_e32", "_e64"), o.kind, rd=o.rd, wr=o.wr)
        out[j] = n
    raise RuntimeError("align failed")


HEADER = """; Fused RepLKNet block: depthwise 5x5+3x3 conv (sparse MFMA) -> LayerNorm -> 96x384 GEMM -> GELU(tanh) -> 384x96 GEMM -> +x
; Kernarg layout for this problem (64 bytes, ptrs only, base s[0:1]):
;   offset   0: d_in[0] x  shape=(1, 384, 384, 96) dtype=bfloat16
;   offset   8: d_in[1] dw_large  shape=(3, 3, 96) dtype=bfloat16
;   offset  16: d_in[2] dw_small  shape=(5, 5, 96) dtype=bfloat16
;   offset  24: d_in[3] w1  shape=(96, 384) dtype=bfloat16
;   offset  32: d_in[4] w2  shape=(384, 96) dtype=bfloat16
;   offset  40: d_out     shape=(1, 384, 384, 96) dtype=bfloat16
;   offset  48: d_debug, offset 56: d_ws (unused)
; generated by gen/gen.py (own generator)
; @launch grid=(256,1,1) block=(256,1,1) lds=%d
.amdgcn_target "amdgcn-amd-amdhsa--gfx950"
.text
.globl %s
.p2align 8
.type %s,@function
%s:
""" % (LDS_BYTES, NAME, NAME, NAME)

FOOTER = """.section .rodata,"a"
.p2align 6
.amdhsa_kernel %s
  .amdhsa_next_free_vgpr 512
  .amdhsa_next_free_sgpr 96
  .amdhsa_accum_offset 256
  .amdhsa_group_segment_fixed_size 0
  .amdhsa_kernarg_size 64
  .amdhsa_user_sgpr_count 2
  .amdhsa_user_sgpr_kernarg_segment_ptr 1
  .amdhsa_system_sgpr_workgroup_id_x 1
.end_amdhsa_kernel
""" % NAME


def build(verbose=True):
    pro = prologue()
    pro, lq, vq = resolve_waits(pro)
    pro = fix_hazards(pro)
    body = loop_body()
    rep = []
    body_r, lq2, vq2 = resolve_waits(body, loop=True, init_lds=lq, init_vm=vq, report=rep)
    hz = []
    body_h = fix_hazards(body_r, prev_tail=body_r, report=hz)
    body_h = align_pk(body_h, 0)
    l1, v1_ = verify_waits(pro)
    l2, v2_ = verify_waits(body_h, l1, v1_)
    l3, v3_ = verify_waits(body_h, l2, v2_)
    fix_hazards(body_h, prev_tail=body_h, fix=False)
    pro_end = [nop(7), nop(3)]
    fix_hazards(body_h, prev_tail=pro + pro_end, fix=False)
    tail = tail_code()
    tail, _, _ = resolve_waits(tail, init_lds=lq2, init_vm=vq2)
    tail = fix_hazards(tail, prev_tail=body_h)
    verify_waits(tail, l3, v3_)
    if verbose:
        for a, b in rep:
            print(f"forced wait: {b:32s} before {a}", file=sys.stderr)
        for a, b, n in hz:
            print(f"hazard nop {n}: {a}  ->  {b}", file=sys.stderr)
        times, total = simulate(body_h)
        print(f"loop model cycles: {total}, instrs {len(body_h)}, bytes {sum(x.nbytes for x in body_h)}", file=sys.stderr)
        simulate(body_h, verbose=True)
        print(f"prologue model cycles: {simulate(pro)[1]}, bytes {sum(x.nbytes for x in pro)}; tail {simulate(tail)[1]}", file=sys.stderr)
    times, total = simulate(body_h)
    out = [HEADER]
    fmt = lambda x: (x.text if x.kind == 'label' else "    " + x.text)
    out += [fmt(x) for x in pro + pro_end]
    out.append(".p2align 6")
    out.append("L_loop:")
    out += [fmt(x) + f"    ; t={tm}" for x, tm in zip(body_h, times)]
    out += [fmt(x) for x in tail]
    out.append("L_end:")
    out.append("    s_endpgm")
    out.append("L_border:")
    out += [fmt(x) for x in border_fix()]
    out.append("    s_branch L_border_ret")
    out.append(FOOTER)
    return "\n".join(out)


if __name__ == "__main__":
    txt = build()
    path = sys.argv[1] if len(sys.argv) > 1 else "standalone__modern_conv_block_replknet__vision.s"
    open(path, "w").write(txt)
```

```python
import math
import struct
import sys
from ir import *

NAME = "standalone__modern_conv_block_replknet__vision_kernel"
XBYTES = 384 * 384 * 96 * 2
ROWB = 384 * 192
PAIRB = 2 * ROWB
STRIPB = 32 * 192

PLANE = 288
RS = 24 * PLANE
SLOT = 2 * RS
L_RING = 0
L_ZERO = 3 * SLOT
L_HB = 45056
L_WREG = 61440
WREG = 21504
O_A, O_AD, O_X = 0, 12288, 15360
L_W1 = 0
L_W2 = 73728
L_T = 147456
TSTR = 400
L_TZ = L_T + 25 * TSTR
LDS_BYTES = 157696


def f2u(x):
    return struct.unpack('<I', struct.pack('<f', x))[0]


K0 = 2.0 * math.sqrt(2.0 / math.pi) * math.log2(math.e)
K1 = K0 * 0.044715
ALPHA = K1 ** (1.0 / 3.0)
CPRIME = K0 / ALPHA
EPS = 1e-5

vBA, vBB, vBC = V(0), V(1), V(2)
vLA, vLB, vLC = V(3), V(4), V(5)
vWB, vXB, vHR, vHW, vSR, vIDX = V(6), V(7), V(8), V(9), V(10), V(11)
vGS, vWL, vGO, vT0 = V(12), V(13), V(14), V(15)
vID = V(16, 8)
vST = V(24, 16)
POOL = 40
bufB = [V(POOL + 0, 8), V(POOL + 12, 8)]
bufA = [V(POOL + 8, 4), V(POOL + 20, 4)]
vAD = V(POOL + 24, 4)
vBD = [V(POOL + 28, 2), V(POOL + 30, 2)]
vTMP = V(POOL + 32, 8)
vXR = V(POOL + 12, 12)
vACC = V(80, 24)
vH = V(104, 24)
vT = V(128, 16)
vA = [V(144, 16), V(160, 16)]
vD2 = V(176, 48)


def wfrag(i):
    return A(4 * i, 4) if i < 64 else V(224 + 4 * (i - 64), 4)


sPX, sPL, sPS, sP1, sP2, sPO = S(4, 2), S(6, 2), S(8, 2), S(10, 2), S(12, 2), S(14, 2)
srdX, srdO, srdA, srdB = S(16, 4), S(20, 4), S(24, 4), S(28, 4)
sC, sAL = S(32, 2), S(34, 2)
sLN1, sLN2 = S(36, 2), S(38, 2)
sP = [S(40), S(41), S(42)]
sOFF = [S(43 + i) for i in range(6)]
sRP4, sST4 = S(49), S(50)
sCNT = S(51)
sEST = S(52)
sEM = S(54, 2)
sMK = S(56, 2)
sW = S(58)
sT0, sT1, sT2, sT3 = S(59), S(60), S(61), S(62)
sEPS = S(63)
sTP = S(64, 2)
SCC = ('scc', 0)


def sop(op, dst, *src):
    lit = any(isinstance(x, int) and not (-16 <= x <= 64) for x in src)
    txt = lambda x: (hex(x & 0xffffffff) if isinstance(x, int) and not (-16 <= x <= 64) else str(x))
    t = f"{op} {dst}, " + ", ".join(txt(x) for x in src)
    wr = regs_of(dst) if isinstance(dst, Reg) else frozenset({(dst, 0)})
    ins = salu(t, rd=regs_of(*src), wr=wr)
    ins.nbytes = 8 if lit else 4
    return ins


def scmp(op, a, b):
    lit = isinstance(b, int) and not (-16 <= b <= 64)
    ins = salu(f"{op} {a}, {hex(b) if lit else b}", rd=regs_of(a, b))
    ins.nbytes = 8 if lit else 4
    return ins


def v2(op, dst, a, b):
    lit = isinstance(a, int) and not (-16 <= a <= 64)
    ins = I(f"{op}_e32 {dst}, {hex(a & 0xffffffff) if lit else a}, {b}", 'valu', rd=regs_of(a, b), wr=regs_of(dst))
    ins.nbytes = 8 if lit else 4
    return ins


def v1(op, dst, a):
    lit = isinstance(a, int) and not (-16 <= a <= 64)
    ins = I(f"{op}_e32 {dst}, {hex(a & 0xffffffff) if lit else a}", 'valu', rd=regs_of(a), wr=regs_of(dst))
    ins.nbytes = 8 if lit else 4
    return ins


def v3(op, dst, *src, mods=""):
    return valu(op, dst, *src, mods=mods)


def vcmp(op, dst, a, b):
    return I(f"{op}_e64 {dst}, {a}, {b}", 'valu', rd=regs_of(a, b), wr=regs_of(dst))


def tr32(op, dst, src):
    ins = I(f"{op}_e32 {dst}, {src}", 'trans', rd=regs_of(src), wr=regs_of(dst))
    ins.nbytes = 4
    return ins


def cvt(dst, a, b):
    return valu("v_cvt_pk_bf16_f32", dst, a, b)


def P1(u):
    a = vA[u % 2]
    L = [pk("v_pk_fma_f32", vT.sub(2 * i, 2), a.sub(2 * i, 2), a.sub(2 * i, 2), sC) for i in range(8)]
    L += [pk("v_pk_mul_f32", vT.sub(2 * i, 2), vT.sub(2 * i, 2), a.sub(2 * i, 2), mods="neg_lo:[1,0] neg_hi:[1,0]") for i in range(8)]
    return L


def P2():
    return [pk("v_pk_fma_f32", vT.sub(2 * i, 2), vT.sub(2 * i, 2), sAL, sAL) for i in range(8)]


def P3(u):
    a = vA[u % 2]
    return [pk("v_pk_mul_f32", a.sub(2 * i, 2), a.sub(2 * i, 2), vT.sub(2 * i, 2)) for i in range(8)]


def EXPS():
    return [tr32("v_exp_f32", vT.sub(i), vT.sub(i)) for i in range(16)]


def RCPS():
    return [tr32("v_rcp_f32", vT.sub(i), vT.sub(i)) for i in range(16)]


def CVTG(u):
    a = vA[u % 2]
    return [cvt(a.sub(i), a.sub(2 * i), a.sub(2 * i + 1)) for i in range(8)]


def GEMM1(u):
    a = vA[u % 2]
    return [mfma32(a, wfrag(u * 6 + kc), vH.sub(4 * kc, 4), a if kc else 0) for kc in range(6)]


def GEMM2(u, last=False):
    a = vA[u % 2]
    L = []
    order = [(0, 2), (1, 2), (0, 1), (1, 1), (0, 0), (1, 0)] if last else [(cc, b) for cc in range(2) for b in range(3)]
    for cc, b in order:
        d = vD2.sub(16 * b, 16)
        c = 0 if (u == 0 and cc == 0) else d
        L.append(mfma32(d, wfrag(36 + u * 6 + cc * 3 + b), a.sub(4 * cc, 4), c))
    return L


def RESID():
    d0, d1 = vD2.sub(0, 16), vD2.sub(16, 16)
    return [mfma32(d1, vID.sub(0, 4), vXR.sub(8, 4), d1),
            mfma32(d0, vID.sub(0, 4), vXR.sub(0, 4), d0),
            mfma32(d0, vID.sub(4, 4), vXR.sub(4, 4), d0)]


def conv_reads(k):
    q, s = divmod(k, 2)
    b, a = bufB[k % 2], bufA[k % 2]
    L = [dsr("ds_read_b128", a, vWB, O_A + k * 1024)]
    if s == 0:
        L += [dsr("ds_read_b128", b.sub(0, 4), vBA, q * PLANE), dsr("ds_read_b128", b.sub(4, 4), vBA, q * PLANE + 16)]
    else:
        L += [dsr("ds_read_b128", b.sub(0, 4), vBA, q * PLANE + 32), dsr("ds_read_b128", b.sub(4, 4), vBB, q * PLANE)]
    return L


def conv_sparse(k):
    q = k // 2
    return smfmac16(vACC.sub(4 * q, 4), bufA[k % 2], bufB[k % 2], vIDX)


def dense_reads(q):
    L = []
    if q % 2 == 0:
        L.append(dsr("ds_read_b128", vAD, vWB, O_AD + (q // 2) * 1024))
    L.append(dsr("ds_read_b64", vBD[q % 2], vBC, q * PLANE))
    return L


def conv_dense(q):
    return mfma16k16(vACC.sub(4 * q, 4), vAD.sub(2 * (q % 2), 2), vBD[q % 2], 0)


S1, S2 = vTMP.sub(0, 2), vTMP.sub(2, 2)
SRD0, SRD1 = bufB[0].sub(0, 4), bufB[0].sub(4, 4)
RSSH = vTMP.sub(4, 2)


def stats_pk(q):
    p0, p1 = vACC.sub(4 * q, 2), vACC.sub(4 * q + 2, 2)
    if q == 0:
        return [pk("v_pk_add_f32", S1, p0, p1), pk("v_pk_mul_f32", S2, p0, p0), pk("v_pk_fma_f32", S2, p1, p1, S2)]
    return [pk("v_pk_add_f32", S1, S1, p0), pk("v_pk_fma_f32", S2, p0, p0, S2),
            pk("v_pk_add_f32", S1, S1, p1), pk("v_pk_fma_f32", S2, p1, p1, S2)]


def stats_sc(q):
    p = [vACC.sub(4 * q + i) for i in range(4)]
    fm = lambda d, x: I(f"v_fmac_f32_e32 {d}, {x}, {x}", 'valu', rd=regs_of(d, x), wr=regs_of(d), nbytes=4)
    if q == 0:
        return [v2("v_add_f32", S1.sub(0), p[0], p[2]), v2("v_add_f32", S1.sub(1), p[1], p[3]),
                v2("v_mul_f32", S2.sub(0), p[0], p[0]), v2("v_mul_f32", S2.sub(1), p[1], p[1]),
                fm(S2.sub(0), p[2]), fm(S2.sub(1), p[3])]
    L = []
    for i in range(4):
        L += [v2("v_add_f32", S1.sub(i % 2), S1.sub(i % 2), p[i]), fm(S2.sub(i % 2), p[i])]
    return L


def stats_fold():
    return [v2("v_add_f32", S1.sub(0), S1.sub(0), S1.sub(1)), v2("v_add_f32", S1.sub(1), S2.sub(0), S2.sub(1))]


def stats_write():
    return [dsw("ds_write_b64", vHW, S1, 3072)]


def stats_read():
    return [dsr("ds_read2st64_b64", SRD0, vSR, mods="offset0:6 offset1:14"),
            dsr("ds_read2st64_b64", SRD1, vSR, mods="offset0:22 offset1:30")]


def stats_comb_pk():
    return [pk("v_pk_add_f32", S1, SRD0.sub(0, 2), SRD0.sub(2, 2)),
            pk("v_pk_add_f32", S2, SRD1.sub(0, 2), SRD1.sub(2, 2)),
            pk("v_pk_add_f32", S1, S1, S2),
            pk("v_pk_mul_f32", S1, S1, sLN1)]


def stats_scalar():
    m, e = S1.sub(0), S1.sub(1)
    return [v3("v_fma_f32", e, "-" + str(m), m, e),
            v2("v_max_f32", e, 0, e),
            v2("v_add_f32", e, sEPS, e),
            v2("v_mul_f32", m, sAL.sub(0), m),
            tr32("v_rsq_f32", RSSH.sub(0), e),
            None,
            v3("v_mul_f32_e64", RSSH.sub(1), "-" + str(m), RSSH.sub(0))]


def fix_rd(ins, *regs):
    ins.rd = ins.rd | regs_of(*regs)
    return ins


def norm_pk():
    return [pk("v_pk_fma_f32", vACC.sub(2 * i, 2), vACC.sub(2 * i, 2), RSSH, RSSH, mods="op_sel:[0,0,1] op_sel_hi:[1,0,1]")
            for i in range(12)]


def acc_cvt():
    return [cvt(vACC.sub(i), vACC.sub(2 * i), vACC.sub(2 * i + 1)) for i in range(12)]


def out_cvt():
    return [cvt(vACC.sub(12 + i), vACC.sub(2 * i), vACC.sub(2 * i + 1)) for i in range(11, -1, -1)]


def h_write():
    return [dsw("ds_write_b128", vHW, vACC.sub(4 * s, 4), s * 1024) for s in range(3)]


def h_read():
    return [dsr("ds_read_b128", vH.sub(4 * kc, 4), vHR, (kc // 3) * 4096 + (kc % 3) * 1024) for kc in range(6)]


def exch_write():
    return [dsw("ds_write_b128", vWB, vD2.sub(24 + 4 * k, 4), O_X + k * 1024) for k in (2, 3, 4, 5, 0, 1)]


def exch_read():
    return [dsr("ds_read_b128", vACC.sub(4 * k, 4), vXB, k * 1024) for k in range(6)]


def exch_add():
    return [pk("v_pk_add_f32", vACC.sub(2 * i, 2), vACC.sub(2 * i, 2), vD2.sub(2 * i, 2)) for i in range(12)]


def out_store(soff):
    return [bstore(vACC.sub(12 + 4 * s, 4), vGO, srdO, soff, 32 * s) for s in (2, 1, 0)]


def xres_load(soff):
    return [bload(vXR.sub(4 * s, 4), vGO, srdX, soff, 384 + 32 * s) for s in (2, 0, 1)]


def stage_write(src, addr):
    L = []
    for j in range(4):
        for i in range(2):
            L.append(dsw("ds_write_b64", addr, src.sub(4 * j + 2 * i, 2), (6 * j + i) * PLANE))
    return L


def stage_load(dst, voff, soff):
    return [bload(dst.sub(4 * j, 4), voff, srdX, soff, 48 * j) for j in range(4)]


vHH = vT0


def base_update():
    return [sop("s_sub_u32", sT1, sP[1], sP[0]),
            v2("v_add_u32", vBA, sP[0], vLA), v2("v_add_u32", vBB, sP[2], vLB), v2("v_add_u32", vBC, sP[2], vLC),
            v3("v_mad_i32_i24", vBA, vHH, sT1, vBA)]


def border_fix():
    return [scmp("s_cmp_eq_u32", sT0, 1), raw("s_cselect_b32 exec_lo, -1, 0"), raw("s_mov_b32 exec_hi, 0"),
            v1("v_mov_b32", vBA, L_ZERO), scmp("s_cmp_eq_u32", sT0, 0), raw("s_cselect_b64 exec, -1, 0"),
            v1("v_mov_b32", vBB, L_ZERO), v1("v_mov_b32", vBC, L_ZERO), raw("s_mov_b64 exec, -1")]


import os
STAMP = os.environ.get("STAMP", "")
srdD = S(76, 4)


def stamp(tmp, real=False):
    if not STAMP or PSTAMP:
        return []
    op = "s_memrealtime" if real else "s_memtime"
    st = I(f"buffer_store_dword {tmp}, off, {srdD}, s81", 'vmst', rd=regs_of(tmp), note=('stdata', regs_of(tmp)))
    return [raw(f"{op} s[82:83]", 8), wait(lgkm=0), v1("v_mov_b32", tmp, S(82)), st, raw("s_add_u32 s81, s81, 4")]


PSTAMP = os.environ.get("PSTAMP", "")
PS_REGS = list(range(4, 16, 2)) + list(range(24, 32, 2)) + list(range(64, 76, 2)) + list(range(84, 102, 2))


def add_phase_stamps(body):
    out = []
    n = 0
    prev = None
    for ins in body:
        if ins.kind in ('pk', 'valu', 'trans', 'mfma'):
            cur = ins.kind == 'pk'
            if cur != prev:
                r = PS_REGS[n]
                n += 1
                x = raw(f"s_memtime s[{r}:{r + 1}]", 8)
                x.mark = True
                out.append(x)
            prev = cur
        out.append(ins)
    r = PS_REGS[n]
    x = raw(f"s_memtime s[{r}:{r + 1}]", 8)
    x.mark = True
    out.insert(len(out) - 1, x)
    return out, n + 1


def dump_phase_stamps(n):
    L = [wait(lgkm=0)]
    tmp = vTMP.sub(0)
    for i in range(n):
        L += [v1("v_mov_b32", tmp, S(PS_REGS[i])),
              I(f"buffer_store_dword {tmp}, off, {srdD}, s81", 'vmst', rd=regs_of(tmp), note=('stdata', regs_of(tmp))),
              raw("s_add_u32 s81, s81, 4")]
    return L


def np_phase(ops, valu_list, pre=(), tail=44):
    out = list(pre)
    vl = [x for x in valu_list]
    cost = lambda x: 8 if x.kind == 'trans' else 4

    def memcost(m, sh, mem):
        c = 4 + 4 * len(sh)
        if mem:
            c = max(c, 8) + sum(x.cost or (12 if x.kind == 'bar' else 4) for x in mem)
        return max(c, m.blk)

    n = len(ops)
    need = []
    for i, (m, sh, mem) in enumerate(ops):
        busy = 4 * m.passes + (8 if m.note == 'legacy' else 0)
        if i == n - 1:
            busy = 4 * m.passes + 12 if tail else 0
        need.append(max(0, busy - memcost(m, sh, mem)))
    total_v = sum(cost(x) for x in vl)
    extra = max(0, total_v - sum(need))
    acc_target = 0
    acc = 0
    for i, (m, sh, mem) in enumerate(ops):
        rd = set(m.rd)
        for x in mem:
            rd |= x.rd
        last = -1
        for k, x in enumerate(vl):
            if x.wr & rd:
                last = k
        if last >= 0:
            print(f"note: flushed {last + 1} valu before {m.text}", file=sys.stderr)
            for x in vl[:last + 1]:
                out.append(x)
                acc += cost(x)
            vl = vl[last + 1:]
        out.append(m)
        out += sh
        out += mem
        acc_target += need[i] + extra / n
        if i == n - 1:
            out += vl
            vl = []
        else:
            got = 0
            rest_need = sum(need[i + 1:])
            while vl and (got < need[i] or acc + cost(vl[0]) / 2 <= acc_target):
                rem = sum(cost(x) for x in vl) - cost(vl[0])
                if got >= need[i] and rem < rest_need:
                    break
                x = vl.pop(0)
                out.append(x)
                got += cost(x)
                acc += cost(x)
    return out


AW = lambda: [AutoWait()]


def plain(ms):
    return [(m, AW(), []) for m in ms]


def merge(a, b):
    out = []
    na, nb = len(a), len(b)
    i = j = 0
    while i < na or j < nb:
        if j >= nb or (i < na and i * nb <= j * na):
            out.append(a[i]); i += 1
        else:
            out.append(b[j]); j += 1
    return out


def scalar_updates():
    G = []
    for i in range(5):
        G.append(sop("s_mov_b32", sOFF[i], sOFF[i + 1]))
    return G


def ln_scalar():
    sc = [x for x in stats_scalar() if x is not None]
    fix_rd(sc[0], S1.sub(0))
    fix_rd(sc[5], S1.sub(0))
    return sc


def loop_body():
    B = []
    W = lambda **k: [wait(**k)]
    su = scalar_updates()
    B += P3(5) + P1(0)
    cg = CVTG(5)
    g2 = GEMM2(5, last=True)
    rs = RESID()
    bu = base_update()
    ew, er = exch_write(), exch_read()
    ops = [(rs[0], [bu[0]], []), (g2[0], [], []), (g2[1], [], []), (g2[2], [], []), (g2[3], [], []),
           (rs[1], [], ew[0:1]), (rs[2], [], ew[1:2]), (g2[4], [], ew[2:3]), (g2[5], [], ew[3:4])]
    B += np_phase(ops, cg + bu[1:] + EXPS())
    B += P2()
    g1 = GEMM1(1)
    bd = [sop("s_sub_u32", sT0, sRP4, 2), scmp("s_cmp_lt_u32", sT0, 2), raw("s_cbranch_scc1 L_border"), label("L_border_ret")]
    ops = [(g1[0], [bd[0]], ew[4:5]), (g1[1], [bd[1]], ew[5:6]), (g1[2], bd[2:4], []), (g1[3], [], []),
           (g1[4], W(lgkm=0), [bar()] + er), (g1[5], [], conv_reads(0) + dense_reads(0) + dense_reads(1))]
    B += np_phase(ops, RCPS())
    B += P3(0) + P1(1) + [wait(lgkm=6), nop()] + exch_add()
    cg = CVTG(0)
    g2 = GEMM2(0)
    oc = out_cvt()
    st = out_store(sOFF[0])
    ops = [(g2[0], AW(), conv_reads(1)), (g2[1], [], []), (g2[2], [], st[0:1]), (conv_dense(0), [], []), (g2[3], AW(), st[1:2]),
           (conv_dense(1), [], []), (g2[4], AW(), st[2:3] + dense_reads(2) + dense_reads(3)), (conv_sparse(0), [], conv_reads(2)),
           (conv_sparse(1), [], conv_reads(3)), (g2[5], [sop("s_mov_b32", srdO.sub(2), XBYTES)], [])]
    B += np_phase(ops, cg[6:] + oc + EXPS(), pre=cg[:6])
    B += P2()
    g1 = GEMM1(2)
    ops = [(g1[0], AW(), []), (conv_sparse(2), [], conv_reads(4)), (g1[1], AW(), []), (conv_sparse(3), [], conv_reads(5)),
           (g1[2], AW(), []), (conv_dense(2), [], []), (g1[3], AW(), []), (conv_dense(3), [], []),
           (g1[4], AW(), dense_reads(4) + dense_reads(5)), (conv_sparse(4), [], conv_reads(6)), (conv_sparse(5), [], conv_reads(7)),
           (g1[5], AW(), [])]
    rc = RCPS()
    B += np_phase(ops, rc[:3] + stats_sc(0) + rc[3:10] + stats_sc(1) + rc[10:])
    B += P3(1) + P1(2)
    cg = CVTG(1)
    g2 = GEMM2(1)
    ex = EXPS()
    ops = [(conv_sparse(6), [], conv_reads(8)), (conv_sparse(7), [], conv_reads(9)), (g2[0], AW(), []), (conv_dense(4), [], []),
           (g2[1], AW(), []), (conv_dense(5), [], []), (g2[2], AW(), []), (conv_sparse(8), [], conv_reads(10)),
           (conv_sparse(9), [], conv_reads(11)), (g2[3], AW(), []), (g2[4], AW(), []), (g2[5], AW(), [])]
    B += np_phase(ops, cg + stats_sc(2) + ex, pre=W(lgkm=0))
    B += P2() + stats_pk(3)
    g1 = GEMM1(3)
    rc = RCPS()
    ops = [(g1[0], AW(), []), (conv_sparse(10), [], []), (conv_sparse(11), [], []), (g1[1], [su[0]], []), (g1[2], [su[1]], []),
           (g1[3], [su[2]], []), (g1[4], [su[3]], []), (g1[5], [su[4]], stats_write())]
    B += np_phase(ops, rc[:3] + stats_sc(4) + rc[3:7] + stats_sc(5) + stats_fold() + rc[7:])
    B += P3(2) + P1(3)
    cg = CVTG(2)
    g2 = GEMM2(2)
    wa = v2("v_add_u32", vTMP.sub(6), sP[0], vWL)
    mk = [scmp("s_cmp_eq_u32", sST4, sEST), sop("s_cselect_b64", sMK, sEM, 0), scmp("s_cmp_le_u32", sCNT, 3),
          sop("s_cselect_b64", sMK, -1, sMK)]
    ops = [(g2[0], W(lgkm=0), [bar()] + stats_read()), (g2[1], [mk[0]], []), (g2[2], [mk[1]], []), (g2[3], [mk[2]], []),
           (g2[4], [mk[3]], []), (g2[5], W(lgkm=0), [])]
    B += np_phase(ops, cg[6:] + [wa] + EXPS(), pre=cg[:6])
    B += P2() + stats_comb_pk()
    g1 = GEMM1(4)
    sc = ln_scalar()
    rc = RCPS()
    sw = stage_write(vST, vTMP.sub(6))
    cm = I(f"v_cndmask_b32_e64 {vTMP.sub(7)}, {vGS}, 4.0, {sMK}", 'valu', rd=regs_of(vGS, sMK), wr=regs_of(vTMP.sub(7)))
    sl = stage_load(vST, vTMP.sub(7), sOFF[4])
    rot = [sop("s_mov_b32", sT0, sP[0]), sop("s_mov_b32", sP[0], sP[1]), sop("s_mov_b32", sP[1], sP[2]), sop("s_mov_b32", sP[2], sT0)]
    xl = xres_load(sOFF[0])
    ops = [(g1[0], [rot[0]], []), (g1[1], [rot[1]], xl[0:1]), (g1[2], [rot[2]], []), (g1[3], [rot[3]], xl[1:2]), (g1[4], [], []),
           (g1[5], [], xl[2:3])]
    B += np_phase(ops, sc[:5] + rc[:1] + sc[5:] + [cm] + rc[1:])
    B += P3(3) + P1(4) + norm_pk()
    cg = CVTG(3)
    g2 = GEMM2(3)
    hw = h_write()
    ac = acc_cvt()
    ops = [(g2[0], [], []), (g2[1], [], []), (g2[2], [], hw[0:1]), (g2[3], [], hw[1:2]), (g2[4], [], hw[2:3]), (g2[5], [], [])]
    B += np_phase(ops, cg[6:] + ac + EXPS(), pre=cg[:6])
    B += P2()
    g1 = GEMM1(5)
    ops = [(g1[0], W(vm=8), sw[0:1]), (g1[1], [], sw[1:2]), (g1[2], [], sl[0:1]), (g1[3], [], sw[2:3]), (g1[4], [], sw[3:4]),
           (g1[5], [], sl[1:2])]
    B += np_phase(ops, RCPS())
    B += P3(4) + P1(5)
    cg = CVTG(4)
    g2 = GEMM2(4)
    hr = h_read()
    ops = [(g2[0], W(lgkm=0), [bar()] + hr[0:3]), (g2[1], [], hr[3:6]), (g2[2], [], []), (g2[3], [], []),
           (g2[4], [], []), (g2[5], W(lgkm=0), [])]
    B += np_phase(ops, cg[6:] + EXPS(), pre=cg[:6])
    B += P2()
    g1 = GEMM1(0)
    trk = [sop("s_add_u32", sRP4, sRP4, 1), scmp("s_cmp_eq_u32", sRP4, 192), sop("s_cselect_b32", sT1, sT2, sT3),
           sop("s_cselect_b32", sRP4, 0, sRP4), sop("s_addc_u32", sST4, sST4, 0), sop("s_add_u32", sOFF[5], sOFF[5], sT1)]
    ops = [(g1[0], W(vm=2), sw[4:5]), (g1[1], [], sw[5:6]), (g1[2], [], sw[6:7]), (g1[3], [], sw[7:8]), (g1[4], [], sl[2:3]),
           (g1[5], [], sl[3:4])]
    B += np_phase(ops, RCPS())
    B += stamp(vTMP.sub(0))
    if STAMP and not PSTAMP:
        B += [scmp("s_cmp_lg_u32", sCNT, 0)]
    B += [raw("s_cbranch_scc1 L_loop")]
    pend = trk + [sop("s_sub_u32", sCNT, sCNT, 1), scmp("s_cmp_lg_u32", sCNT, 0)]
    start = B.index(mk[3]) + 1
    out = B[:start]
    for i in range(start, len(B)):
        out.append(B[i])
        if B[i].kind == 'mfma' and B[i].blk >= 8 and pend and B[i + 1].kind not in ('salu', 'wait', 'autowait', 'raw'):
            if pend[0].kind == 'wait' and B[i] is not g1[5]:
                continue
            out.append(pend.pop(0))
    assert not pend
    return out


def tail_code():
    B = []
    B += P3(5)
    cg = CVTG(5)
    g2 = GEMM2(5, last=True)
    rs = RESID()
    ew = exch_write()
    B += rs[0:1] + cg + g2[0:4] + rs[1:3] + g2[4:5] + ew[0:4] + g2[5:6] + ew[4:6]
    B += [bar()] + exch_read() + exch_add() + out_cvt() + out_store(sOFF[0])
    B += stamp(vTMP.sub(0))
    if STAMP:
        B += [wait(vm=0)]
    B += stamp(vTMP.sub(0)) + stamp(vTMP.sub(0), real=True)
    return B


DBG = os.environ.get("DBG", "")
dbg_slot = [0]


def dump(reg, tidreg):
    L = [nop(15), nop(7)]
    base = dbg_slot[0] * 65536
    dbg_slot[0] += 1
    for i in range(reg.n):
        L.append(sop("s_mov_b32", S(80), base + i * 1024))
        L.append(bstore(reg.sub(i), tidreg, srdD, S(80)))
    L.append(wait(vm=0))
    return L


VORDER = os.environ.get("VORDER", "mix")
VFIRST = int(os.environ.get("VFIRST", "4"))
VSTEP = int(os.environ.get("VSTEP", "24"))


def cnd(dst, a, b, m):
    return I(f"v_cndmask_b32_e64 {dst}, {a}, {b}, {m}", 'valu', rd=regs_of(a, b, m), wr=regs_of(dst))


def prologue():
    B = []
    e = B.append
    lane, wv = V(200), V(201)
    t = [V(202 + i) for i in range(22)]
    e(raw("s_cmp_ge_u32 s2, 0x100", 8))
    e(raw("s_cbranch_scc1 L_end"))
    if STAMP:
        e(raw("s_memrealtime s[84:85]", 8))
        e(raw("s_memtime s[86:87]", 8))
    e(raw("s_load_dwordx8 s[4:11], s[0:1], 0x0", 8))
    e(raw("s_load_dwordx4 s[12:15], s[0:1], 0x20", 8))
    e(raw("s_getpc_b64 s[64:65]"))
    e(v2("v_lshlrev_b32", t[0], 6, V(0)))
    e(I(f"global_load_dword {t[1]}, {t[0]}, s[64:65]", 'vmld', rd=regs_of(t[0]), wr=regs_of(t[1])))
    e(v2("v_and_b32", lane, 63, V(0)))
    e(v2("v_lshrrev_b32", wv, 6, V(0)))
    e(sop("s_and_b32", sT0, S(2), 7))
    e(I(f"v_readfirstlane_b32 {sW}, {wv}", 'valu', rd=regs_of(wv), wr=regs_of(sW), nbytes=4))
    e(sop("s_lshl_b32", sT0, sT0, 5))
    e(sop("s_lshr_b32", sT1, S(2), 3))
    e(sop("s_add_u32", sT0, sT0, sT1))
    e(sop("s_mul_i32", sT0, sT0, 9))
    sG = S(66)
    strips = [S(68 + i) for i in range(6)]

    def offs(i):
        L = [sop("s_add_i32", sG, sT0, i - 1)]
        if i == 0:
            L.append(sop("s_max_i32", sG, sG, 0))
        L += [sop("s_mul_i32", strips[i], sG, 21846), sop("s_lshr_b32", strips[i], strips[i], 22),
              sop("s_mul_i32", sT1, strips[i], 192), sop("s_sub_u32", sRP4, sG, sT1), sop("s_mul_i32", sT1, sRP4, PAIRB),
              sop("s_mul_i32", sT2, strips[i], STRIPB), sop("s_add_u32", sOFF[i], sT1, sT2)]
        return L

    for i in range(6):
        B.extend(offs(i))
    e(sop("s_mov_b32", sST4, strips[5]))
    dS = [V(224, 4), V(228, 4)]
    dL = [V(232, 4), V(236, 4)]
    tw = [t[5], t[6]]
    oS = [t[7], t[8]]
    oL = [t[9], t[10]]
    for r in range(2):
        it, tap, oc, ty, tx = oS[r], t[11], t[12], t[13], t[14]
        if r == 0:
            e(v1("v_mov_b32", it, V(0)))
        else:
            e(v2("v_add_u32", it, 256, V(0)))
            e(v2("v_min_u32", it, 303, it))
        e(v2("v_mul_u32_u24", tap, 1366, it))
        e(v2("v_lshrrev_b32", tap, 14, tap))
        e(v2("v_mul_u32_u24", oc, 12, tap))
        e(v2("v_sub_u32", oc, it, oc))
        e(v2("v_lshlrev_b32", it, 4, it))
        e(v2("v_mul_u32_u24", tw[r], TSTR, tap))
        e(v3("v_lshl_add_u32", tw[r], oc, 5, tw[r]))
        e(v2("v_add_u32", tw[r], L_T, tw[r]))
        e(v2("v_mul_u32_u24", ty, 52, tap))
        e(v2("v_lshrrev_b32", ty, 8, ty))
        e(v2("v_mul_u32_u24", tx, 5, ty))
        e(v2("v_sub_u32", tx, tap, tx))
        e(v2("v_subrev_u32", ty, 1, ty))
        e(v2("v_subrev_u32", tx, 1, tx))
        e(v2("v_max_u32", tap, ty, tx))
        e(vcmp("v_cmp_gt_u32", sTP, 3, tap))
        e(v2("v_mul_u32_u24", ty, 576, ty))
        e(v2("v_mul_u32_u24", tx, 192, tx))
        e(v2("v_lshlrev_b32", oc, 4, oc))
        e(v3("v_add3_u32", oL[r], ty, tx, oc))
        e(cnd(oL[r], "4.0", oL[r], sTP))
    px, r3 = t[2], t[3]
    e(v2("v_min_u32", t[4], 53, lane))
    e(v2("v_mul_u32_u24", px, 86, t[4]))
    e(v2("v_lshrrev_b32", px, 8, px))
    e(v2("v_mul_u32_u24", r3, 3, px))
    e(v2("v_sub_u32", r3, t[4], r3))
    e(sop("s_and_b32", sT1, sW, 1))
    e(sop("s_lshr_b32", sT2, sW, 1))
    e(sop("s_mul_i32", sT3, sT1, 18))
    e(v2("v_add_u32", px, sT3, px))
    e(v2("v_mul_u32_u24", vGS, 192, px))
    e(v3("v_lshl_add_u32", vGS, r3, 4, vGS))
    e(sop("s_mul_i32", sT3, sT2, ROWB))
    e(v2("v_add_u32", vGS, sT3, vGS))
    e(v2("v_subrev_u32", t[4], 2, px))
    e(vcmp("v_cmp_le_u32", sEM, 32, t[4]))
    e(sop("s_mul_i32", sEST, sT1, 11))
    e(v2("v_mul_u32_u24", vWL, 2 * PLANE, r3))
    e(v3("v_lshl_add_u32", vWL, px, 3, vWL))
    e(sop("s_mul_i32", sT3, sT2, RS))
    e(v2("v_add_u32", vWL, sT3, vWL))
    xo = [V(192 + i) for i in range(5)]
    for i in range(5):
        e(scmp("s_cmp_eq_u32", strips[i], sEST))
        e(sop("s_cselect_b64", sMK, sEM, 0))
        e(cnd(xo[i], vGS, "4.0", sMK))
    w1o = [V(188 + p) for p in range(3)]
    for p in range(3):
        U, row = t[11], t[12]
        e(v2("v_add_u32", U, 64 * p, lane))
        e(v2("v_mul_u32_u24", row, 1366, U))
        e(v2("v_lshrrev_b32", row, 16, row))
        e(v2("v_lshlrev_b32", row, 2, row))
        e(v2("v_xor_b32", U, row, lane))
        e(v2("v_lshlrev_b32", w1o[p], 4, U))
    l16 = V(191)
    e(v2("v_lshlrev_b32", l16, 4, lane))
    sWB, sD0, sD1 = S(74), S(75), S(67)
    e(sop("s_mul_i32", sWB, sW, 18432))
    if DBG:
        e(raw("s_load_dwordx2 s[76:77], s[0:1], 0x38", 8))
        e(v2("v_lshlrev_b32", V(199), 2, V(0)))
        e(scmp("s_cmp_eq_u32", S(2), 0))
        e(sop("s_cselect_b32", S(78), 0x1000000, 0))
        e(sop("s_mov_b32", S(79), 0x20000))
    if STAMP:
        e(raw("s_load_dwordx2 s[76:77], s[0:1], 0x38", 8))
        e(sop("s_mov_b32", S(78), 0x1000000))
        e(sop("s_mov_b32", S(79), 0x20000))
        e(sop("s_lshl_b32", S(81), S(2), 2))
        e(sop("s_add_u32", S(81), S(81), sW))
        e(sop("s_lshl_b32", S(81), S(81), 7))
    e(sop("s_mov_b32", srdX.sub(2), XBYTES + 384))
    e(sop("s_mov_b32", srdX.sub(3), 0x20000))
    e(sop("s_mov_b32", srdA.sub(2), 4800))
    e(sop("s_mov_b32", srdA.sub(3), 0x20000))
    e(sop("s_mov_b32", srdB.sub(2), 1728))
    e(sop("s_mov_b32", srdB.sub(3), 0x20000))
    e(wait(lgkm=0))
    if STAMP:
        for r in (84, 86):
            e(v1("v_mov_b32", V(198), S(r)))
            e(I(f"buffer_store_dword v198, off, {srdD}, s81", 'vmst', rd=regs_of(V(198)), note=('stdata', regs_of(V(198)))))
            e(raw("s_add_u32 s81, s81, 4"))
    B.extend(stamp(V(198)))
    e(sop("s_mov_b32", srdA.sub(0), sPS.sub(0)))
    e(sop("s_mov_b32", srdA.sub(1), sPS.sub(1)))
    e(sop("s_mov_b32", srdB.sub(0), sPL.sub(0)))
    e(sop("s_mov_b32", srdB.sub(1), sPL.sub(1)))
    for r in range(2):
        e(bload(dS[r], oS[r], srdA, 0))
        e(bload(dL[r], oL[r], srdB, 0))
    e(sop("s_sub_u32", srdX.sub(0), sPX.sub(0), 384))
    e(sop("s_subb_u32", srdX.sub(1), sPX.sub(1), 0))
    e(sop("s_mov_b32", srdA.sub(0), sP1.sub(0)))
    e(sop("s_mov_b32", srdA.sub(1), sP1.sub(1)))
    e(sop("s_mov_b32", srdA.sub(2), 73728))
    e(sop("s_mov_b32", srdB.sub(0), sP2.sub(0)))
    e(sop("s_mov_b32", srdB.sub(1), sP2.sub(1)))
    e(sop("s_mov_b32", srdB.sub(2), 73728))

    xs = [V(104 + 16 * i, 16) for i in range(4)] + [vST]
    tag1, tag2 = set(), set()

    def dma_group(which, grp):
        L = [sop("s_add_u32", sD0, sWB, grp * 3072)]
        if which == 0:
            L.append(sop("s_mov_b32", "m0", sD0))
        else:
            L += [sop("s_add_u32", sD1, sD0, L_W2), sop("s_mov_b32", "m0", sD1)]
        for p in range(3):
            d = bload_lds(w1o[p] if which == 0 else l16, srdA if which == 0 else srdB, sD0, p * 1024)
            tg = (f"dma{which}", grp * 3 + p)
            d.wr = frozenset({tg})
            (tag1 if which == 0 else tag2).add(tg)
            L.append(d)
        return L

    X = [stage_load(xs[i], xo[i], sOFF[i]) for i in range(5)]
    D1 = [dma_group(0, g) for g in range(6)]
    D2 = [dma_group(1, g) for g in range(6)]
    xh = [X[i][2 * k:2 * k + 2] for i in range(3) for k in range(2)]
    xq = [X[i][k:k + 1] for i in range(3) for k in range(4)]
    if VORDER == "mix":
        VS = []
        for g in range(12):
            VS.append(xq[g] + (D1 + D2)[g])
    elif VORDER == "xw1":
        VS = [xh[g] + D1[g] for g in range(6)] + D2
    elif VORDER == "xfirst":
        VS = X[:3] + D1 + D2
    elif VORDER == "wfirst":
        VS = D1 + D2 + X[:3]
    elif VORDER == "w1xw2":
        VS = D1 + [xh[g] + D2[g] for g in range(6)]
    VS += [X[3], X[4]]

    C = []
    e = C.append
    e(sop("s_mov_b32", srdO.sub(0), sPO.sub(0)))
    e(sop("s_mov_b32", srdO.sub(1), sPO.sub(1)))
    e(sop("s_mov_b32", srdO.sub(2), 0))
    e(sop("s_mov_b32", srdO.sub(3), 0x20000))
    e(sop("s_mov_b32", sC.sub(0), f2u(CPRIME)))
    e(sop("s_mov_b32", sC.sub(1), f2u(CPRIME)))
    e(sop("s_mov_b32", sAL.sub(0), f2u(ALPHA)))
    e(sop("s_mov_b32", sAL.sub(1), f2u(ALPHA)))
    e(sop("s_mov_b32", sLN1.sub(0), f2u(1.0 / (96 * ALPHA))))
    e(sop("s_mov_b32", sLN1.sub(1), f2u(1.0 / (96 * ALPHA * ALPHA))))
    e(sop("s_mov_b32", sEPS, f2u(EPS / (ALPHA * ALPHA))))
    e(sop("s_mov_b32", sCNT, 9))
    n16, g4, n32, hh, g0b, c4 = t[11], t[12], t[13], vHH, t[2], t[3]
    e(v2("v_and_b32", n16, 15, lane))
    e(v2("v_lshrrev_b32", g4, 4, lane))
    e(v2("v_and_b32", n32, 31, lane))
    e(v2("v_lshrrev_b32", hh, 5, lane))
    e(v2("v_and_b32", g0b, 1, g4))
    e(v2("v_and_b32", c4, 3, lane))
    dy, dx, ry, cx, cb, zt = t[14], t[15], t[16], t[17], t[18], t[19]
    e(v3("v_bfe_u32", dy, lane, 3, 1))
    e(v3("v_bfe_u32", dx, lane, 2, 1))
    e(sop("s_mul_i32", sT1, sW, 96))
    e(sop("s_add_u32", sT1, sT1, L_T))
    e(v3("v_lshl_add_u32", cb, c4, 2, sT1))
    e(v1("v_mov_b32", zt, L_TZ))
    ga = [V(176 + i) for i in range(9)]
    tmp = [t[20], t[21]]
    a2 = t[4]

    def tap_addr(dst, ry, cx, ay, ax):
        e(v2("v_add_u32", tmp[0], ay, ry))
        e(v2("v_add_u32", tmp[1], ax, cx))
        e(v2("v_max_u32", dst, tmp[0], tmp[1]))
        e(vcmp("v_cmp_gt_u32", sTP, 5, dst))
        e(v3("v_mad_u32_u24", tmp[0], tmp[0], 5, tmp[1]))
        e(v2("v_mul_u32_u24", tmp[0], TSTR, tmp[0]))
        e(v2("v_add_u32", tmp[0], tmp[0], cb))
        e(cnd(dst, zt, tmp[0], sTP))

    e(v2("v_lshlrev_b32", a2, 1, g0b))
    e(v2("v_sub_u32", ry, a2, dy))
    e(v2("v_lshlrev_b32", cx, 1, hh))
    e(v2("v_sub_u32", cx, cx, dx))
    for j in range(4):
        tap_addr(ga[j], ry, cx, j >> 1, j & 1)
    e(vcmp("v_cmp_eq_u32", sTP, 0, hh))
    e(cnd(ry, 4, a2, sTP))
    e(cnd(cx, a2, 4, sTP))
    e(v2("v_sub_u32", ry, ry, dy))
    e(v2("v_sub_u32", cx, cx, dx))
    for j in range(4):
        tap_addr(ga[4 + j], ry, cx, j >> 1, j & 1)
    e(v2("v_sub_u32", ry, hh, dy))
    e(v2("v_sub_u32", cx, g0b, dx))
    tap_addr(ga[8], ry, cx, 4, 4)
    e(sop("s_mul_i32", sT1, sW, 6 * PLANE))
    e(v2("v_mul_u32_u24", vLA, RS, g0b))
    e(v3("v_lshl_add_u32", vLA, n16, 4, vLA))
    e(v2("v_add_u32", vLA, sT1, vLA))
    e(v3("v_lshl_add_u32", vLB, hh, 4, vLA))
    e(v2("v_mul_u32_u24", vLC, RS, hh))
    e(v3("v_lshl_add_u32", vLC, n16, 4, vLC))
    e(v3("v_lshl_add_u32", vLC, g0b, 3, vLC))
    e(sop("s_add_u32", sT1, sT1, 32))
    e(v2("v_add_u32", vLC, sT1, vLC))
    e(sop("s_mul_i32", sT1, sW, WREG))
    e(sop("s_add_u32", sT1, sT1, L_WREG))
    e(v2("v_add_u32", vWB, sT1, l16))
    e(sop("s_xor_b32", sT2, sW, 1))
    e(sop("s_mul_i32", sT2, sT2, WREG))
    e(sop("s_add_u32", sT2, sT2, L_WREG + O_X))
    e(v2("v_add_u32", vXB, sT2, l16))
    e(sop("s_lshr_b32", sT2, sW, 1))
    e(sop("s_and_b32", sT3, sW, 1))
    e(sop("s_lshl_b32", sT1, sT2, 9))
    e(sop("s_add_u32", sT1, sT1, L_HB))
    e(v2("v_lshlrev_b32", vHR, 13, hh))
    e(v3("v_lshl_add_u32", vHR, n32, 4, vHR))
    e(v2("v_add_u32", vHR, sT1, vHR))
    e(v2("v_add_u32", vSR, L_HB, l16))
    e(sop("s_lshl_b32", sT1, sW, 12))
    e(v2("v_add_u32", vHW, sT1, vSR))
    e(v2("v_mul_u32_u24", vIDX, 0x5555, c4))
    e(v3("v_lshl_add_u32", vGO, n16, 1, g0b))
    e(v2("v_mul_u32_u24", vGO, 192, vGO))
    e(v3("v_lshl_add_u32", vGO, hh, 4, vGO))
    e(sop("s_mul_i32", sT1, sT2, ROWB))
    e(sop("s_mul_i32", S(66), sT3, 96))
    e(sop("s_add_u32", sT1, sT1, S(66)))
    e(v2("v_add_u32", vGO, sT1, vGO))
    sel_lo, sel_hi = S(40), S(41)
    e(sop("s_mov_b32", sel_lo, 0x05040100))
    e(sop("s_mov_b32", sel_hi, 0x07060302))
    for r in range(2):
        tb = V(240 + 8 * r, 8)
        for d in range(4):
            e(v3("v_perm_b32", tb.sub(2 * d), dL[r].sub(d), dS[r].sub(d), sel_lo))
            e(v3("v_perm_b32", tb.sub(2 * d + 1), dL[r].sub(d), dS[r].sub(d), sel_hi))
        e(dsw("ds_write_b128", tw[r], tb.sub(0, 4), 0))
        e(dsw("ds_write_b128", tw[r], tb.sub(4, 4), 16))
    ee, one = t[16], t[17]
    e(v3("v_lshl_add_u32", ee, dy, 2, c4))
    e(v3("v_lshl_add_u32", ee, g0b, 3, ee))
    e(v2("v_xor_b32", one, dx, hh))
    e(v3("v_lshl_add_u32", ee, one, 5, ee))
    e(v2("v_and_b32", one, 1, ee))
    e(v2("v_lshlrev_b32", one, 4, one))
    e(v1("v_mov_b32", tmp[0], 0x3f80))
    e(v2("v_lshlrev_b32", one, one, tmp[0]))
    e(v2("v_lshrrev_b32", ee, 1, ee))
    mm = [S(82, 2), S(88, 2), S(90, 2), S(92, 2)] if not STAMP else [S(94, 2), S(88, 2), S(90, 2), S(92, 2)]
    for r0 in (0, 4):
        for r in range(4):
            e(vcmp("v_cmp_eq_u32", mm[r], r0 + r, ee))
        for r in range(4):
            e(cnd(vID.sub(r0 + r), 0, one, mm[r]))
    e(bar())
    C.extend(stamp(V(198)))
    AF = V(40, 48)
    AD = V(88, 12)
    dn = [V(224 + q) for q in range(6)]
    for q in range(6):
        e(dsr("ds_read_b32", dn[q], ga[8], 16 * q))
    for j in range(8):
        for q in range(6):
            e(dsr("ds_read_b32", AF.sub(8 * q + j), ga[j], 16 * q))
    sh = t[16]
    e(v2("v_and_b32", sh, 1, lane))
    e(v2("v_lshlrev_b32", sh, 4, sh))
    e(vcmp("v_cmp_gt_u32", sTP, 2, c4))
    for q in range(6):
        e(v2("v_lshlrev_b32", tmp[0], 16, dn[q]))
        e(v2("v_and_b32", tmp[1], 0xffff0000, dn[q]))
        e(v2("v_add_f32", tmp[0], tmp[0], tmp[1]))
        e(valu("v_cvt_pk_bf16_f32", tmp[0], tmp[0], 0))
        e(v2("v_lshlrev_b32", tmp[0], sh, tmp[0]))
        e(cnd(AD.sub(2 * q), 0, tmp[0], sTP))
        e(cnd(AD.sub(2 * q + 1), tmp[0], 0, sTP))
    r4, c1, c2 = t[14], t[15], t[16]
    e(v3("v_bfe_u32", r4, lane, 2, 2))
    e(v2("v_and_b32", c1, 1, lane))
    e(v3("v_bfe_u32", c2, lane, 1, 1))
    a1 = [V(168 + u) for u in range(6)]
    a2r = [V(185 + b) for b in range(3)]
    rowb, un, xr = t[17], t[18], t[19]
    e(v3("v_mad_u32_u24", rowb, hh, 48, r4))
    e(v2("v_mul_u32_u24", rowb, 768, rowb))
    e(v3("v_lshl_add_u32", rowb, c1, 3, rowb))
    e(v3("v_lshl_add_u32", un, g0b, 1, c2))
    e(sop("s_mul_i32", sT1, sT3, 24))
    e(v2("v_add_u32", un, sT1, un))
    e(v2("v_lshlrev_b32", xr, 2, r4))
    for u in range(6):
        e(v2("v_add_u32", a1[u], 4 * u, un))
        e(v2("v_xor_b32", a1[u], a1[u], xr))
        e(v3("v_lshl_add_u32", a1[u], a1[u], 4, rowb))
    e(v3("v_lshl_add_u32", rowb, hh, 2, r4))
    e(v2("v_mul_u32_u24", rowb, 192, rowb))
    e(sop("s_mul_i32", sT1, sT3, 192 * 192))
    e(sop("s_add_u32", sT1, sT1, L_W2))
    e(v2("v_add_u32", rowb, sT1, rowb))
    e(v3("v_lshl_add_u32", rowb, c1, 4, rowb))
    e(v3("v_lshl_add_u32", rowb, g0b, 5, rowb))
    e(v3("v_lshl_add_u32", rowb, c2, 3, rowb))
    e(sop("s_mul_i32", sT1, sT3, 96))
    e(sop("s_sub_u32", sT2, 0, sT1))
    e(v2("v_add_u32", a2r[0], sT1, rowb))
    e(v2("v_add_u32", a2r[2], sT2, rowb))
    e(vcmp("v_cmp_eq_u32", sTP, 0, g0b))
    zr = V(100, 4)
    for i in range(4):
        e(v1("v_mov_b32", zr.sub(i), 0))
    e(cnd(a2r[1], a2r[2], a2r[0], sTP))
    e(sop("s_lshl_b32", sT1, sT3, 9))
    e(sop("s_add_u32", sT1, sT1, L_ZERO))
    za = t[14]
    e(v2("v_add_u32", za, sT1, l16))
    for i in range(3):
        e(sop("s_mov_b32", sP[i], i * SLOT))
    ra = [vWL, t[15], t[16]]
    e(v2("v_add_u32", ra[1], SLOT, vWL))
    e(v2("v_add_u32", ra[2], 2 * SLOT, vWL))
    C.extend(base_update())
    e(sop("s_sub_u32", sT0, sRP4, 3))
    for g in VS[:VFIRST]:
        B.extend(g)
    VS = VS[VFIRST:]
    cnt = 0
    for ins in C:
        if VS and cnt >= VSTEP and not ins.text.startswith(("s_cselect", "s_subb", "s_addc")):
            B.extend(VS.pop(0))
            cnt = 0
        B.append(ins)
        cnt += 1
    for g in VS:
        B.extend(g)
    e = B.append
    B.extend(border_fix())
    B.extend(stamp(V(198)))
    b = bar()
    b.rd = frozenset(tag1)
    e(b)
    B.extend(stamp(V(198)))
    for u in range(6):
        for kc in range(6):
            for tau in range(2):
                e(dsr("ds_read_b64_tr_b16", wfrag(u * 6 + kc).sub(2 * tau, 2), a1[u], (8 * kc + 4 * tau) * 768))

    def w2_reads():
        L = []
        for u in range(6):
            for cc in range(2):
                for b_ in range(3):
                    for tau in range(2):
                        L.append(dsr("ds_read_b64_tr_b16", wfrag(36 + u * 6 + cc * 3 + b_).sub(2 * tau, 2), a2r[b_],
                                     (32 * u + 16 * cc + 8 * tau) * 192 + 64 * b_))
        return L

    def a_writes():
        return [dsw("ds_write_b128", vWB, AF.sub(4 * k, 4), O_A + k * 1024) for k in range(12)] + \
               [dsw("ds_write_b128", vWB, AD.sub(4 * k, 4), O_AD + k * 1024) for k in range(3)]

    W2EARLY = os.environ.get("W2EARLY", "1") == "1"
    b = bar()
    if W2EARLY:
        b.rd = frozenset(tag2)
    e(b)
    B.extend(stamp(V(198)))
    e(dsw("ds_write_b128", za, zr))
    if W2EARLY:
        B.extend(w2_reads())
    for i in range(3):
        B.extend(stage_write(xs[i], ra[i]))
    e(bar())
    B.extend(stamp(V(198)))
    CA = V(176, 24)
    BB = [V(104 + 8 * k, 8) for k in range(6)] + [V(200 + 8 * k, 8) for k in range(3)]
    BDs = [V(168 + 2 * (q % 4), 2) for q in range(4)] + [V(100, 2), V(102, 2)]
    a2s = [V(0 + 0)]

    def breads(k, b):
        q, s_ = divmod(k, 2)
        if s_ == 0:
            return [dsr("ds_read_b128", b.sub(0, 4), vBA, q * PLANE), dsr("ds_read_b128", b.sub(4, 4), vBA, q * PLANE + 16)]
        return [dsr("ds_read_b128", b.sub(0, 4), vBA, q * PLANE + 32), dsr("ds_read_b128", b.sub(4, 4), vBB, q * PLANE)]

    assert W2EARLY
    for q in range(6):
        e(dsr("ds_read_b64", BDs[q], vBC, q * PLANE))
    order = [0, 2, 4, 6, 8, 10, 1, 3, 5, 7, 9, 11]
    for i in range(9):
        B.extend(breads(order[i], BB[i]))
    for q in range(6):
        e(mfma16k16(CA.sub(4 * q, 4), AD.sub(2 * q, 2), BDs[q], 0))
    for i in range(12):
        k = order[i]
        e(smfmac16(CA.sub(4 * (k // 2), 4), AF.sub(4 * k, 4), BB[i % 9], vIDX))
        if i + 9 < 12:
            B.extend(breads(order[i + 9], BB[i]))
    global vACC, S1, S2, RSSH, SRD0, SRD1
    saved = (vACC, S1, S2, RSSH, SRD0, SRD1)
    vACC, S1, S2, RSSH, SRD0, SRD1 = CA, V(128, 2), V(130, 2), V(132, 2), V(136, 4), V(140, 4)
    aw = a_writes()
    B.extend(aw[:2])
    for q in range(6):
        B.extend(stats_pk(q))
    B.extend(stats_fold() + stats_write())
    B.extend(aw[2:5])
    e(bar())
    B.extend(stats_read())
    B.extend(aw[5:10])
    B.extend(stats_comb_pk())
    B.extend(ln_scalar() + norm_pk() + acc_cvt() + h_write())
    vACC, S1, S2, RSSH, SRD0, SRD1 = saved
    for i in range(3):
        e(sop("s_mov_b32", sP[i], ((i + 1) % 3) * SLOT))
    e(sop("s_mov_b32", sT2, (STRIPB - 191 * PAIRB) & 0xffffffff))
    e(sop("s_mov_b32", sT3, PAIRB))
    e(bar())
    B.extend(h_read())
    B.extend(stage_write(xs[3], vWL))
    g1 = GEMM1(0)
    for i in range(6):
        e(g1[i])
        B.extend(aw[10 + i:11 + i])
    B.extend(stamp(V(198)))
    return B


def align_pk(seq, start):
    out = list(seq)
    skip = set()
    for _ in range(400):
        addr = start
        bad = None
        for i, ins in enumerate(out):
            if ins.kind == 'pk' and addr % 8 and (i == 0 or out[i - 1].kind != 'pk') and i not in skip:
                bad = i
                break
            addr += ins.nbytes
        if bad is None:
            return out
        j = bad - 1
        while j >= 0 and out[j].kind != 'pk' and not (out[j].kind == 'trans' and out[j].nbytes == 4):
            j -= 1
        if j < 0 or out[j].kind == 'pk':
            print(f"warning: misaligned pk run at {out[bad].text}", file=sys.stderr)
            skip.add(bad)
            continue
        o = out[j]
        n = I(o.text.replace("_e32", "_e64"), o.kind, rd=o.rd, wr=o.wr)
        out[j] = n
    raise RuntimeError("align failed")


HEADER = """; Fused RepLKNet block: depthwise 5x5+3x3 conv (sparse MFMA) -> LayerNorm -> 96x384 GEMM -> GELU(tanh) -> 384x96 GEMM -> +x
; Kernarg layout for this problem (64 bytes, ptrs only, base s[0:1]):
;   offset   0: d_in[0] x  shape=(1, 384, 384, 96) dtype=bfloat16
;   offset   8: d_in[1] dw_large  shape=(3, 3, 96) dtype=bfloat16
;   offset  16: d_in[2] dw_small  shape=(5, 5, 96) dtype=bfloat16
;   offset  24: d_in[3] w1  shape=(96, 384) dtype=bfloat16
;   offset  32: d_in[4] w2  shape=(384, 96) dtype=bfloat16
;   offset  40: d_out     shape=(1, 384, 384, 96) dtype=bfloat16
;   offset  48: d_debug, offset 56: d_ws (unused)
; generated by gen/gen.py (own generator)
; @launch grid=(256,1,1) block=(256,1,1) lds=%d
.amdgcn_target "amdgcn-amd-amdhsa--gfx950"
.text
.globl %s
.p2align 8
.type %s,@function
%s:
""" % (LDS_BYTES, NAME, NAME, NAME)

FOOTER = """.section .rodata,"a"
.p2align 6
.amdhsa_kernel %s
  .amdhsa_next_free_vgpr 512
  .amdhsa_next_free_sgpr 102
  .amdhsa_accum_offset 256
  .amdhsa_group_segment_fixed_size 0
  .amdhsa_kernarg_size 64
  .amdhsa_user_sgpr_count 2
  .amdhsa_user_sgpr_kernarg_segment_ptr 1
  .amdhsa_system_sgpr_workgroup_id_x 1
.end_amdhsa_kernel
""" % NAME


def build(verbose=True):
    pro = prologue()
    pro, lq, vq = resolve_waits(pro)
    pro = fix_hazards(pro)
    body = loop_body()
    if PSTAMP:
        body, nps = add_phase_stamps(body)
    rep = []
    body_r, lq2, vq2 = resolve_waits(body, loop=True, init_lds=lq, init_vm=vq, report=rep)
    hz = []
    body_h = fix_hazards(body_r, prev_tail=body_r, report=hz)
    body_h = align_pk(body_h, 0)
    l1, v1_ = verify_waits(pro)
    l2, v2_ = verify_waits(body_h, l1, v1_)
    l3, v3_ = verify_waits(body_h, l2, v2_)
    fix_hazards(body_h, prev_tail=body_h, fix=False)
    pro_end = [nop(7), nop(3)]
    fix_hazards(body_h, prev_tail=pro + pro_end, fix=False)
    tail = tail_code()
    if PSTAMP:
        tail = tail + dump_phase_stamps(nps)
        tm, _ = simulate(body_h)
        mk = [t_ for x, t_ in zip(body_h, tm) if getattr(x, 'mark', False)]
        print("model phase deltas:", [b - a for a, b in zip(mk, mk[1:])], file=sys.stderr)
    tail, _, _ = resolve_waits(tail, init_lds=lq2, init_vm=vq2)
    tail = fix_hazards(tail, prev_tail=body_h)
    verify_waits(tail, l3, v3_)
    if verbose:
        for a, b in rep:
            print(f"forced wait: {b:32s} before {a}", file=sys.stderr)
        for a, b, n in hz:
            print(f"hazard nop {n}: {a}  ->  {b}", file=sys.stderr)
        times, total = simulate(body_h)
        print(f"loop model cycles: {total}, instrs {len(body_h)}, bytes {sum(x.nbytes for x in body_h)}", file=sys.stderr)
        simulate(body_h, verbose=True)
        print(f"prologue model cycles: {simulate(pro)[1]}, bytes {sum(x.nbytes for x in pro)}; tail {simulate(tail)[1]}", file=sys.stderr)
    times, total = simulate(body_h)
    out = [HEADER]
    fmt = lambda x: (x.text if x.kind == 'label' else "    " + x.text)
    out += [fmt(x) for x in pro + pro_end]
    out.append(".p2align 6")
    out.append("L_loop:")
    out += [fmt(x) + f"    ; t={tm}" for x, tm in zip(body_h, times)]
    out += [fmt(x) for x in tail]
    out.append("L_end:")
    out.append("    s_endpgm")
    out.append("L_border:")
    out += [fmt(x) for x in border_fix()]
    out.append("    s_branch L_border_ret")
    out.append(FOOTER)
    return "\n".join(out)


if __name__ == "__main__":
    txt = build()
    path = sys.argv[1] if len(sys.argv) > 1 else "standalone__modern_conv_block_replknet__vision.s"
    open(path, "w").write(txt)
```
